```python
import torch

def _softmax(x, axis=-1):
    return torch.softmax(x, dim=axis)
def _gelu(x):
    return torch.nn.functional.gelu(x, approximate="tanh")
def _silu(x):
    return torch.nn.functional.silu(x)
def _sigmoid(x):
    return torch.sigmoid(x)
def _layernorm(x, axis=-1, eps=1e-5):
    m = x.mean(dim=axis, keepdim=True)
    v = x.var(dim=axis, keepdim=True, unbiased=False)
    return (x - m) / torch.sqrt(v + eps)
def _scatter_add(tgt, idx, src, axis=0):
    return tgt.clone().index_add_(axis, idx, src)
def _segment_sum(src, seg, n):
    out = torch.zeros((n,) + src.shape[1:], dtype=src.dtype)
    return out.index_add_(0, seg, src)
def _pad(x, pw):
    flat = tuple(v for pair in reversed(pw) for v in pair)
    return torch.nn.functional.pad(x, flat)

kernel_name = 'parallel_sum__softmax_full_mha__dense_activation_gelu__prompt'

def setup_inputs():

    _w = (lambda a: (lambda t: t.to(torch.bfloat16) if t.is_floating_point() else t)(torch.as_tensor(a)))
    def _A_setup():
        B, S, D = 1, 2048, 1024
        return {
            "x": _w((lambda *s: torch.randn(*s, dtype=torch.bfloat16) * 0.05)(B, S, D)),
            "wqkv": _w((lambda *s: torch.randn(*s, dtype=torch.bfloat16) * 0.05)(D, 3 * D)),
            "wo": _w((lambda *s: torch.randn(*s, dtype=torch.bfloat16) * 0.05)(D, D)),
        }
    _A_in = _A_setup()

    def _B_setup():
        B, S, D, F = 1, 2048, 1024, 3584
        return {
            "x": _w((lambda *s: torch.randn(*s, dtype=torch.bfloat16) * 0.05)(B, S, D)),
            "w1": _w((lambda *s: torch.randn(*s, dtype=torch.bfloat16) * 3.2)(D, F) * (D ** -0.5)),
            "b1": _w((lambda *s: torch.randn(*s, dtype=torch.bfloat16) * 3.2)(F) * 0.01),
            "w2": _w((lambda *s: torch.randn(*s, dtype=torch.bfloat16) * 0.4)(F, D) * (F ** -0.5)),
            "b2": _w((lambda *s: torch.randn(*s, dtype=torch.bfloat16) * 0.4)(D) * 0.01),
        }
    _B_in = _B_setup()

    return {
        "A_x": _A_in["x"],
        "A_wqkv": _A_in["wqkv"],
        "A_wo": _A_in["wo"],
        "B_x": _B_in["x"],
        "B_w1": _B_in["w1"],
        "B_b1": _B_in["b1"],
        "B_w2": _B_in["w2"],
        "B_b2": _B_in["b2"],
    }

def reference(A_x, A_wqkv, A_wo, B_x, B_w1, B_b1, B_w2, B_b2):
    def _A_ref(x, wqkv, wo):
        B, S, D = x.shape
        H = 32; Dh = D // H
        qkv = (lambda x, *d: x.permute(*d))((x @ wqkv).reshape(B, S, 3, H, Dh), 2, 0, 3, 1, 4)
        q, k, v = qkv[0], qkv[1], qkv[2]
        scale = Dh ** -0.5
        scores = torch.einsum("bhqd,bhkd->bhqk", q, k) * scale
        p = _softmax(scores, axis=-1)
        o = torch.einsum("bhqk,bhkd->bhqd", p, v)
        return (lambda x, *d: x.permute(*d))(o, 0, 2, 1, 3).reshape(B, S, D) @ wo

    def _B_ref(x, w1, b1, w2, b2):
        h = torch.einsum("bsd,df->bsf", x, w1) + b1
        h = _gelu(h)
        return torch.einsum("bsf,fd->bsd", h, w2) + b2

    x = A_x
    xn = _layernorm(x, axis=-1)
    return x + _A_ref(xn, A_wqkv, A_wo) + _B_ref(xn, B_w1, B_b1, B_w2, B_b2)
```

```python
import re

class Asm:
    def __init__(self, prefix):
        self.lines = []
        self.prefix = prefix
        self.nlab = 0
    def e(self, s):
        for l in s.strip().split("\n"):
            l = l.strip()
            if l: self.lines.append("    " + l)
    def c(self, s):
        self.lines.append("    ; " + s)
    def label(self, name):
        self.lines.append(f"{self.prefix}_{name}:")
    def L(self, name):
        return f"{self.prefix}_{name}"
    def text(self):
        return "\n".join(self.lines) + "\n"

def v(i, n=1):
    return f"v{i}" if n == 1 else f"v[{i}:{i+n-1}]"
def s(i, n=1):
    return f"s{i}" if n == 1 else f"s[{i}:{i+n-1}]"

def kernel_text(name, body, nvgpr, nsgpr=102):
    nv = (nvgpr + 3) // 4 * 4
    return f""".text
.globl {name}
.p2align 8
.type {name},@function
{name}:
{body}
.section .rodata,"a"
.p2align 6
.amdhsa_kernel {name}
  .amdhsa_next_free_vgpr {nvgpr}
  .amdhsa_next_free_sgpr {nsgpr}
  .amdhsa_accum_offset {nv}
  .amdhsa_group_segment_fixed_size 0
  .amdhsa_kernarg_size 88
  .amdhsa_user_sgpr_count 2
  .amdhsa_user_sgpr_kernarg_segment_ptr 1
  .amdhsa_system_sgpr_workgroup_id_x 1
  .amdhsa_float_denorm_mode_32 3
.end_amdhsa_kernel
"""

_reg = re.compile(r"\b([vsa])(\d+)\b|\b([vsa])\[(\d+):(\d+)\]|\b(vcc|exec|m0|scc)\b")
def regs_of(op):
    out = set()
    for m in _reg.finditer(op):
        if m.group(1): out.add((m.group(1), int(m.group(2))))
        elif m.group(3):
            for i in range(int(m.group(4)), int(m.group(5)) + 1): out.add((m.group(3), i))
        else: out.add((m.group(6), 0))
    return out

TRANS = ("v_exp_", "v_log_", "v_rcp_", "v_rsq_", "v_sqrt_", "v_sin_", "v_cos_")
def parse(line):
    line = line.split(";")[0].strip()
    if not line or line.endswith(":") or line.startswith("."): return None
    parts = line.split(None, 1)
    mn = parts[0]
    ops = [o.strip() for o in parts[1].split(",")] if len(parts) > 1 else []
    d = dict(mn=mn, ops=ops, line=line)
    isv = mn.startswith("v_")
    d["mfma"] = mn.startswith("v_mfma")
    d["valu"] = isv and not d["mfma"]
    d["trans"] = mn.startswith(TRANS)
    d["vmem"] = mn.startswith(("buffer_", "global_", "flat_"))
    d["ds"] = mn.startswith("ds_")
    d["salu"] = mn.startswith("s_")
    w, r = set(), set()
    if d["mfma"]:
        w = regs_of(ops[0]); d["A"] = regs_of(ops[1]); d["B"] = regs_of(ops[2]); d["C"] = regs_of(ops[3])
        r = d["A"] | d["B"] | d["C"]
        d["passes"] = 8 if "32x32" in mn else 4
    elif isv:
        if mn.startswith("v_cmp"):
            w = regs_of(ops[0]); r = set().union(*[regs_of(o) for o in ops[1:]])
        elif "permlane" in mn and "swap" in mn:
            w = regs_of(ops[0]) | regs_of(ops[1]); r = set(w)
        elif mn.startswith(("v_add_co", "v_sub_co", "v_addc", "v_subb")):
            w = regs_of(ops[0]) | regs_of(ops[1]); r = set().union(*[regs_of(o) for o in ops[2:]])
        else:
            w = regs_of(ops[0]); r = set().union(*[regs_of(o) for o in ops[1:]]) if len(ops) > 1 else set()
            if mn.startswith(("v_fmac", "v_dot2c")) or "_dpp" in mn or "row_" in line or "quad_perm" in line: r |= w
    elif d["vmem"]:
        if "store" in mn or ("atomic" in mn):
            r = set().union(*[regs_of(o) for o in ops])
            d["sdata"] = regs_of(ops[0]) if mn.startswith("buffer_") else regs_of(ops[1])
            if "atomic" in mn and " sc0" in line: w = regs_of(ops[0])
        elif " lds" in line:
            r = set().union(*[regs_of(o) for o in ops]) | {("m0", 0)}
        else:
            w = regs_of(ops[0]); r = set().union(*[regs_of(o) for o in ops[1:]])
    elif d["ds"]:
        if mn.startswith(("ds_write", "ds_add", "ds_or", "ds_max")):
            r = set().union(*[regs_of(o) for o in ops])
        else:
            w = regs_of(ops[0]); r = set().union(*[regs_of(o) for o in ops[1:]])
    elif d["salu"]:
        if mn.startswith(("s_cmp", "s_waitcnt", "s_barrier", "s_nop", "s_branch", "s_cbranch", "s_endpgm", "s_setprio", "s_sleep", "s_bitcmp")):
            r = set().union(*[regs_of(o) for o in ops]) if ops else set()
        else:
            w = regs_of(ops[0]); r = set().union(*[regs_of(o) for o in ops[1:]]) if len(ops) > 1 else set()
            if "saveexec" in mn: w |= {("exec", 0)}
    d["w"], d["r"] = w, r
    d["states"] = int(ops[0], 0) + 1 if mn == "s_nop" else 1
    d["dpp"] = isv and ("row_" in line or "quad_perm" in line or "_dpp" in mn)
    return d

def need(p, c):
    n = 0
    vw = {x for x in p["w"] if x[0] in "va"}
    sw = {x for x in p["w"] if x[0] == "s" or x[0] == "vcc"}
    if p["valu"]:
        if c["mfma"] and vw & c["r"]: n = max(n, 2)
        if c["valu"] and c["dpp"] and vw & c["r"]: n = max(n, 2)
        if c["mn"].startswith(("v_readfirstlane", "v_readlane")) and vw & c["r"]: n = max(n, 1)
        if "permlane" in c["mn"] and vw & c["r"]: n = max(n, 2)
        if p["trans"] and c["valu"] and not c["trans"] and vw & c["r"]: n = max(n, 1)
        if p["trans"] and c["mfma"] and vw & c["r"]: n = max(n, 2)
        if sw and c["valu"] and sw & c["r"]: n = max(n, 2)
        if sw and c["vmem"] and sw & c["r"]: n = max(n, 5)
        if sw and c["mn"].startswith(("v_readlane", "v_writelane")) and sw & c["r"]: n = max(n, 4)
        if ("exec", 0) in p["w"] and (c["mfma"] or "permlane" in c["mn"] or c["mn"].startswith("v_read")): n = max(n, 4)
        if ("exec", 0) in p["w"] and c["dpp"]: n = max(n, 5)
    if p["mfma"]:
        big = 12 if p["passes"] == 8 else 8
        if c["mfma"]:
            if p["w"] & (c["A"] | c["B"]): n = max(n, big)
            if p["w"] & c["C"]:
                if not (p["w"] == c["C"] and p["passes"] == c["passes"]): n = max(n, 10 if p["passes"] == 8 else 6)
            elif p["w"] & c["w"]: n = max(n, big)
        elif (c["valu"] or c["vmem"] or c["ds"]) and p["w"] & (c["r"] | c["w"]): n = max(n, big)
        if c["valu"] and p["C"] & c["w"]: n = max(n, 7 if p["passes"] == 8 else 3)
    if p["salu"] and ("m0", 0) in p["w"] and c["vmem"] and ("m0", 0) in c["r"]: n = max(n, 1)
    if p["vmem"] and "sdata" in p and ("x4" in p["mn"] or "x3" in p["mn"]):
        if p["sdata"] & c["w"]: n = max(n, 2 if c["valu"] else 1)
    return n

def check_hazards(text, name=""):
    lines = text.split("\n")
    ins, labels = [], {}
    for ln in lines:
        t = ln.split(";")[0].strip()
        if t.endswith(":"): labels[t[:-1]] = len(ins); continue
        d = parse(ln)
        if d: ins.append(d)
    errs = []
    W = 24
    def succs(i):
        d = ins[i]
        mn = d["mn"]
        if mn == "s_endpgm": return []
        if mn == "s_branch": return [labels[d["ops"][0]]]
        if mn.startswith("s_cbranch"): return [i + 1, labels[d["ops"][0]]]
        return [i + 1]
    for i, p in enumerate(ins):
        if not (p["valu"] or p["mfma"] or p["vmem"] or (p["salu"] and ("m0", 0) in p["w"])): continue
        stack = [(j, 0) for j in succs(i)]
        seen = {}
        while stack:
            j, dist = stack.pop()
            if j >= len(ins) or dist >= 13: continue
            if seen.get(j, 99) <= dist: continue
            seen[j] = dist
            c = ins[j]
            n = need(p, c)
            if n > dist: errs.append(f"[{name}] need {n} got {dist}: '{p['line']}' -> '{c['line']}'")
            for k in succs(j): stack.append((k, dist + c["states"]))
    return errs
```

```python
import math, struct
from asmlib import *

KA_X, KA_WQKV, KA_WO, KA_BX, KA_W1, KA_B1, KA_W2, KA_B2, KA_OUT, KA_DBG, KA_WS = [8*i for i in range(11)]
WS_XN   = 0x0000000
WS_QKV  = 0x0400000
WS_AH   = 0x1000000
AH_RB   = 288 * 1024
WS_P    = 0x2400000
WS_BYTES = 0x10000000

def f2u(x):
    return struct.unpack("<I", struct.pack("<f", x))[0]
def fx(x):
    return hex(f2u(x))

def srd(a, d, lo, nbytes):
    a.e(f"s_mov_b32 s{d}, s{lo}")
    a.e(f"s_mov_b32 s{d+1}, s{lo+1}")
    a.e(f"s_mov_b32 s{d+2}, {hex(nbytes)}")
    a.e(f"s_mov_b32 s{d+3}, 0x00020000")

def wave_sum(a, vr, sdst):
    for sh in (1, 2, 4, 8):
        a.e("s_nop 1")
        a.e(f"v_add_f32_dpp v{vr}, v{vr}, v{vr} row_shr:{sh} row_mask:0xf bank_mask:0xf bound_ctrl:0")
    a.e("s_nop 1")
    a.e(f"v_add_f32_dpp v{vr}, v{vr}, v{vr} row_bcast:15 row_mask:0xa bank_mask:0xf")
    a.e("s_nop 1")
    a.e(f"v_add_f32_dpp v{vr}, v{vr}, v{vr} row_bcast:31 row_mask:0xc bank_mask:0xf")
    a.e("s_nop 0")
    a.e(f"v_readlane_b32 s{sdst}, v{vr}, 63")

def interleave(main, other, per, start=0):
    out = []
    k = 0
    for i, m in enumerate(main):
        out.append(m)
        if i >= start:
            n = per[min(i - start, len(per) - 1)] if isinstance(per, (list, tuple)) else per
            for _ in range(n):
                if k < len(other):
                    it = other[k]; k += 1
                    out += it if isinstance(it, list) else [it]
    while k < len(other):
        it = other[k]; k += 1
        out += it if isinstance(it, list) else [it]
    return out

WS_PROF = 0x8000000
class Prof:
    def __init__(self, a, on, kidx=0):
        self.a, self.on, self.n, self.kidx = a, on, 0, kidx
    def stamp(self, i):
        if not self.on: return
        self.a.e(f"s_memtime s[{60+2*i}:{61+2*i}]")
    def real(self, i):
        if not self.on: return
        self.a.e(f"s_memrealtime s[{60+2*i}:{61+2*i}]")
    def dump(self, n, swave, srd_ws, vt=16):
        if not self.on: return
        a = self.a
        a.e("s_waitcnt lgkmcnt(0)")
        a.e(f"s_add_u32 s90, s2, {self.kidx*1024}")
        a.e("s_lshl_b32 s90, s90, 4")
        a.e(f"s_add_u32 s90, s90, s{swave}")
        a.e("s_lshl_b32 s90, s90, 6")
        a.e(f"s_add_u32 s90, s90, {WS_PROF}")
        a.e(f"v_mov_b32 v{vt+1}, 0")
        for i in range(n):
            a.e(f"v_mov_b32 v{vt}, s{60+2*i}")
            a.e(f"buffer_store_dword v{vt}, v{vt+1}, s[{srd_ws}:{srd_ws+3}], s90 offen offset:{4*i}")
            a.e("s_nop 0")
```

```python
from common import *

AT_RING = 65536
AT_PRIV = AT_RING
AT_LDS = AT_RING + 8 * 2048
OOB = 0x40000000

VQ, VNEG, VS, VP, VK, VV, VO, VL, VONE = 4, 12, [32, 48], 64, 72, 80, 96, 112, 116

def gen_attn(st_flags="", prof=False, force_fallback=False):
    a = Asm("at")
    P = Prof(a, prof, 2)
    P.real(0); P.stamp(1)
    a.e(f"""
    s_cmp_ge_u32 s2, 256
    s_cbranch_scc1 {a.L('end')}
    s_load_dwordx2 s[6:7], s[0:1], {KA_WS}
    v_lshrrev_b32 v1, 6, v0
    v_and_b32 v0, 63, v0
    s_lshr_b32 s25, s2, 5
    v_readfirstlane_b32 s24, v1
    s_lshr_b32 s3, s2, 3
    s_and_b32 s3, s3, 3
    s_lshl_b32 s3, s3, 3
    s_and_b32 s26, s2, 7
    s_add_u32 s26, s26, s3
    s_waitcnt lgkmcnt(0)
    """)
    srd(a, 16, 6, WS_BYTES)
    a.e(f"""
    s_lshl_b32 s3, s26, 17
    s_add_u32 s27, s3, {WS_QKV}
    s_add_u32 s28, s3, {WS_QKV + 32*131072}
    s_add_u32 s29, s3, {WS_QKV + 64*131072}
    v_lshlrev_b32 v3, 4, v0
    s_lshl_b32 s3, s24, 10
    s_add_u32 s35, s28, s3
    v_add_u32 v28, s35, v3
    """)
    a.e(f"""
    s_lshr_b32 s35, s24, 1
    s_lshl_b32 s35, s35, 11
    s_and_b32 s36, s24, 1
    s_lshl_b32 s36, s36, 8
    s_add_u32 s35, s35, s36
    s_add_u32 s35, s35, s29
    v_lshrrev_b32 v29, 2, v0
    v_lshlrev_b32 v29, 4, v29
    v_bfe_u32 v30, v0, 1, 1
    v_lshl_add_u32 v29, v30, 10, v29
    v_and_b32 v30, 1, v0
    v_lshl_add_u32 v29, v30, 9, v29
    v_add_u32 v29, s35, v29
    s_lshl_b32 s32, s24, 10
    """)
    def dma(soff, m0l):
        return [list(m0l) + ["s_nop 0", f"buffer_load_dwordx4 v28, s[16:19], {soff} offen lds"],
                ["s_add_u32 m0, m0, 8192", "s_nop 0", f"buffer_load_dwordx4 v29, s[16:19], {soff} offen lds"]]
    def flat(items):
        for it in items:
            for l in (it if isinstance(it, list) else [it]): a.e(l)
    a.e(f"""
    s_lshl_b32 s3, s25, 3
    s_add_u32 s33, s3, s24
    s_lshl_b32 s3, s33, 11
    s_add_u32 s3, s3, s27
    buffer_load_dwordx4 {v(VQ,4)}, v3, s[16:19], s3 offen
    buffer_load_dwordx4 {v(VQ+4,4)}, v3, s[16:19], s3 offen offset:1024
    """)
    for st in range(3):
        a.e(f"s_mov_b32 s30, {st*8192}")
        flat(dma("s30", [f"s_add_u32 m0, s32, {st*16384}"]))
    a.e(f"s_add_u32 s31, s32, {2*16384}")
    a.e(f"""
    v_mov_b32 v1, v3
    v_lshrrev_b32 v30, 5, v0
    v_bfe_u32 v31, v0, 2, 2
    v_lshl_add_u32 v30, v30, 2, v31
    v_lshlrev_b32 v2, 6, v30
    v_bfe_u32 v30, v0, 4, 1
    v_lshl_add_u32 v2, v30, 5, v2
    v_and_b32 v30, 1, v0
    v_lshl_add_u32 v2, v30, 4, v2
    v_bfe_u32 v30, v0, 1, 1
    v_lshl_add_u32 v2, v30, 3, v2
    v_mov_b32 v120, v2
    v_add_u32 v2, 8192, v2
    """)
    a.e(f"""
    v_bfe_u32 v30, v0, 2, 1
    v_bfe_u32 v31, v0, 4, 1
    v_xor_b32 v30, v30, v31
    v_and_b32 v31, 3, v0
    v_or_b32 v30, v30, v31
    v_cmp_eq_u32 vcc, 0, v30
    v_mov_b32 v31, 0x3f803f80
    s_nop 0
    v_cndmask_b32 v{VONE}, 0, v31, vcc
    v_cndmask_b32 v{VONE+1}, 0, v31, vcc
    v_cndmask_b32 v{VONE+2}, 0, v31, vcc
    v_cndmask_b32 v{VONE+3}, 0, v31, vcc
    """)
    for i in range(16): a.e(f"v_mov_b32 v{VO+i}, 0")
    for i in range(4): a.e(f"v_mov_b32 v{VL+i}, 0")
    def kread(t):
        return [f"ds_read_b128 {v(VK+4*kb,4)}, v1 offset:{t*2048+kb*1024}" for kb in range(2)]
    def vread(t, m, vaddr=2):
        return [f"ds_read_b64_tr_b16 {v(VV+4*m+2*q,2)}, v{vaddr} offset:{t*2048+m*1024+q*512}" for q in range(2)]
    def qk(sb, kb, cinit):
        S = v(VS[sb], 16)
        c = cinit if kb == 0 else S
        return f"v_mfma_f32_32x32x16_bf16 {S}, {v(VK+4*kb,4)}, {v(VQ+4*kb,4)}, {c}"
    def rowmax(sb, dst, t0):
        S = VS[sb]
        a.e(f"v_max3_f32 v{dst}, v{S}, v{S+1}, v{S+2}")
        for i in range(3, 15, 2): a.e(f"v_max3_f32 v{dst}, v{dst}, v{S+i}, v{S+i+1}")
        a.e(f"v_max_f32 v{dst}, v{dst}, v{S+15}")
    def halfmax(dst, t0):
        a.e(f"v_mov_b32 v{t0}, v{dst}")
        a.e("s_nop 1")
        a.e(f"v_permlane32_swap_b32 v{dst}, v{t0}")
        a.e("s_nop 1")
        a.e(f"v_max_f32 v{dst}, v{dst}, v{t0}")
    a.e("s_waitcnt vmcnt(4)")
    a.e("s_barrier")
    P.stamp(2); P.real(7)
    flat(kread(0))
    a.e("s_waitcnt lgkmcnt(0)")
    a.e(qk(0, 0, "0")); a.e(qk(0, 1, "0"))
    flat(vread(0, 0)); flat(vread(0, 1))
    a.e("s_nop 9")
    rowmax(0, 30, 31); halfmax(30, 31)
    for i in range(16): a.e(f"v_sub_f32 v{VNEG+i}, 0, v30")
    a.e("s_nop 1")
    a.e(qk(0, 0, v(VNEG, 16))); a.e(qk(0, 1, v(VNEG, 16)))
    flat(kread(1))
    a.e("s_waitcnt lgkmcnt(0)")
    a.e("s_mov_b32 s34, 16")
    a.e("s_nop 6")
    def ex(sb, lo, hi): return [f"v_exp_f32 v{VS[sb]+i}, v{VS[sb]+i}" for i in range(lo, hi)]
    def cv(sb, m): return [f"v_cvt_pk_bf16_f32 v{VP+4*m+i}, v{VS[sb]+8*m+2*i}, v{VS[sb]+8*m+2*i+1}" for i in range(4)]
    def pv(m): return f"v_mfma_f32_32x32x16_bf16 {v(VO,16)}, {v(VV+4*m,4)}, {v(VP+4*m,4)}, {v(VO,16)}"
    def sm(m): return f"v_mfma_f32_16x16x32_bf16 {v(VL,4)}, {v(VONE,4)}, {v(VP+4*m,4)}, {v(VL,4)}"
    a.label("loop")
    for t in range(4):
        sb, nb = t & 1, (t + 1) & 1
        L = []
        L.append("s_waitcnt lgkmcnt(4)")
        L.append(qk(nb, 0, v(VNEG, 16)))
        L += ex(sb, 0, 4)
        L.append(qk(nb, 1, v(VNEG, 16)))
        if t == 2:
            L += ["s_waitcnt vmcnt(2)", "s_barrier", "v_add_u32 v1, 16384, v1", "v_and_b32 v1, 0xffff, v1"]
        L += kread((t + 2) & 3)
        L += ex(sb, 4, 8)
        L += ex(sb, 8, 9)
        L += cv(sb, 0)
        L += ex(sb, 9, 12)
        L.append("s_waitcnt lgkmcnt(4)")
        L.append(pv(0))
        if t == 3:
            L += ["v_add_u32 v2, 16384, v2", "v_and_b32 v2, 0xffff, v2"]
        L += vread((t + 1) & 3, 0)
        L += ex(sb, 12, 16)
        L.append(sm(0))
        L += cv(sb, 1)
        if t == 2:
            d = dma("s30", ["s_add_u32 s30, s30, 8192", "s_cmp_ge_u32 s30, 131072", f"s_cselect_b32 s30, {hex(OOB)}, s30",
                            "s_add_u32 s31, s31, 16384", "s_and_b32 s31, s31, 0xffff", "s_mov_b32 m0, s31"])
            L += d[0] + d[1]
        else:
            L.append("s_nop 0")
        L.append("s_waitcnt lgkmcnt(4)")
        L.append(pv(1))
        L += vread((t + 1) & 3, 1)
        L.append(sm(1))
        flat(L)
    a.e(f"""
    s_sub_u32 s34, s34, 1
    s_cmp_lg_u32 s34, 0
    s_cbranch_scc1 {a.L('loop')}
    s_waitcnt lgkmcnt(0)
    s_nop 7
    """)
    P.stamp(3); P.real(8)
    a.e(f"v_max3_f32 v30, abs(v{VO}), abs(v{VO+1}), abs(v{VO+2})")
    for i in range(3, 15, 2): a.e(f"v_max3_f32 v30, v30, abs(v{VO+i}), abs(v{VO+i+1})")
    a.e(f"v_max_f32 v30, v30, abs(v{VO+15})")
    a.e(f"v_sub_f32 v31, v{VO}, v{VO}")
    for i in range(1, 16): a.e(f"v_fma_f32 v31, v{VO+i}, 0, v31")
    a.e(f"""
    v_add_f32 v31, v31, v{VL}
    v_mov_b32 v30, {fx(2.0**64)}
    v_cmp_nlt_f32 vcc, v31, v30
    s_cmp_lg_u64 vcc, 0
    """)
    if force_fallback: a.e("s_cmp_eq_u32 s34, 0")
    a.e(f"s_cbranch_scc1 {a.L('slow')}")
    a.label("fin")
    a.e(f"v_rcp_f32 v30, v{VL}")
    a.e(f"""
    s_mul_i32 s3, s33, {AH_RB}
    s_lshl_b32 s35, s26, 11
    s_add_u32 s3, s3, s35
    s_add_u32 s3, s3, {WS_AH}
    """)
    for i in range(16): a.e(f"v_mul_f32 v{VO+i}, v{VO+i}, v30")
    for i in range(8): a.e(f"v_cvt_pk_bf16_f32 v{VP+i}, v{VO+2*i}, v{VO+2*i+1}")
    a.e(f"buffer_store_dwordx4 {v(VP,4)}, v3, s[16:19], s3 offen {st_flags}")
    a.e(f"buffer_store_dwordx4 {v(VP+4,4)}, v3, s[16:19], s3 offen offset:1024 {st_flags}")
    P.stamp(4)
    if prof: a.e("s_waitcnt vmcnt(0)")
    P.stamp(5); P.real(6)
    P.dump(9, 24, 16, vt=30)
    a.label("end")
    a.e("s_endpgm")

    a.label("slow")
    a.e("s_waitcnt vmcnt(0)")
    a.e(f"v_mov_b32 v30, 0xff800000")
    a.e("s_mov_b32 s34, 0")
    a.label("slow1")
    a.e(f"""
    s_add_u32 s3, s28, s34
    buffer_load_dwordx4 {v(VK,4)}, v3, s[16:19], s3 offen
    buffer_load_dwordx4 {v(VK+4,4)}, v3, s[16:19], s3 offen offset:1024
    s_waitcnt vmcnt(0)
    """)
    a.e(qk(0, 0, "0")); a.e(qk(0, 1, "0"))
    a.e("s_nop 11")
    rowmax(0, 31, 121)
    a.e(f"""
    v_max_f32 v30, v30, v31
    s_add_u32 s34, s34, 2048
    s_cmp_lt_u32 s34, 131072
    s_cbranch_scc1 {a.L('slow1')}
    """)
    halfmax(30, 31)
    for i in range(16): a.e(f"v_sub_f32 v{VNEG+i}, 0, v30")
    for i in range(16): a.e(f"v_mov_b32 v{VO+i}, 0")
    for i in range(4): a.e(f"v_mov_b32 v{VL+i}, 0")
    a.e(f"""
    s_lshl_b32 s36, s24, 11
    s_add_u32 s36, s36, {AT_PRIV}
    v_add_u32 v120, s36, v120
    v_lshrrev_b32 v29, 2, v0
    v_lshlrev_b32 v29, 4, v29
    v_bfe_u32 v31, v0, 1, 1
    v_lshl_add_u32 v29, v31, 10, v29
    v_and_b32 v31, 1, v0
    v_lshl_add_u32 v29, v31, 9, v29
    s_mov_b32 s34, 0
    """)
    a.label("slow2")
    a.e(f"""
    s_add_u32 s3, s28, s34
    buffer_load_dwordx4 {v(VK,4)}, v3, s[16:19], s3 offen
    buffer_load_dwordx4 {v(VK+4,4)}, v3, s[16:19], s3 offen offset:1024
    s_add_u32 s3, s29, s34
    s_mov_b32 m0, s36
    s_nop 0
    buffer_load_dwordx4 v29, s[16:19], s3 offen lds
    s_add_u32 s3, s3, 256
    s_add_u32 m0, s36, 1024
    s_nop 0
    buffer_load_dwordx4 v29, s[16:19], s3 offen lds
    s_waitcnt vmcnt(0)
    """)
    a.e(qk(0, 0, v(VNEG, 16))); a.e(qk(0, 1, v(VNEG, 16)))
    flat(vread(0, 0, 120)); flat(vread(0, 1, 120))
    a.e("s_nop 9")
    flat(ex(0, 0, 16))
    a.e("s_nop 0")
    flat(cv(0, 0)); flat(cv(0, 1))
    a.e("s_waitcnt lgkmcnt(0)")
    a.e("s_nop 0")
    a.e(pv(0)); a.e(pv(1)); a.e(sm(0)); a.e(sm(1))
    a.e(f"""
    s_add_u32 s34, s34, 2048
    s_cmp_lt_u32 s34, 131072
    s_cbranch_scc1 {a.L('slow2')}
    s_nop 15
    s_branch {a.L('fin')}
    """)
    return a.text(), 128
```

```python
from common import *

XSLOT = 32768
WBASE = 3 * XSLOT
WSLOT = 13312
G1_LDS = WBASE + 4 * WSLOT
QSCALE = (32 ** -0.5) * math.log2(math.e)
OOB = 0x40000000

V_DMA = 2
V_XA = 8
V_XR = 12
V_WA = 14
V_WR = 15
V_T = 16
V_BUF = [32, 76]
V_ACC = 128

def magic_div(d, maxc):
    for sh in range(16, 24):
        m = ((1 << sh) + d - 1) // d
        if m < (1 << 24) and all((c * m) >> sh == c // d for c in range(maxc)) and maxc * m < (1 << 32):
            return m, sh
    raise ValueError

def gen_gemm1(a_from_ws=True, st_flags="", prof=False, dbg=()):
    a = Asm("g1")
    P = Prof(a, prof, 1)
    P.real(0); P.stamp(1)
    a.e(f"""
    s_cmp_ge_u32 s2, 256
    s_cbranch_scc1 {a.L('end')}
    s_load_dwordx2 s[4:5], s[0:1], {KA_X}
    s_load_dwordx2 s[6:7], s[0:1], {KA_WS}
    s_load_dwordx2 s[36:37], s[0:1], {KA_WQKV}
    s_load_dwordx2 s[38:39], s[0:1], {KA_W1}
    s_load_dwordx2 s[40:41], s[0:1], {KA_B1}
    v_lshrrev_b32 v1, 6, v0
    v_and_b32 v0, 63, v0
    s_lshr_b32 s25, s2, 5
    v_readfirstlane_b32 s24, v1
    s_and_b32 s26, s2, 7
    s_lshl_b32 s26, s26, 2
    s_lshr_b32 s3, s2, 3
    s_and_b32 s3, s3, 3
    s_add_u32 s26, s26, s3
    s_waitcnt lgkmcnt(0)
    """)
    srd(a, 8, 6 if a_from_ws else 4, 2048 * 2048)
    srd(a, 16, 6, WS_BYTES)
    srd(a, 20, 40, 3584 * 2)
    srd(a, 12, 38, 1024 * 7168)
    a.e(f"""
    s_mov_b32 s30, {32*7168}
    s_mov_b32 s27, 16
    s_mov_b32 s34, 0
    s_cmp_ge_u32 s24, 4
    s_cbranch_scc1 {a.L('w1')}
    """)
    m14, sh14 = magic_div(14, 448)
    m12, sh12 = magic_div(12, 384)

    def w1_chunk_voff(vd, vc, t0, t1):
        a.e(f"""
        v_mul_u32_u24 v{t0}, {m14}, v{vc}
        v_lshrrev_b32 v{t0}, {sh14}, v{t0}
        v_mul_u32_u24 v{t1}, 14, v{t0}
        v_sub_u32 v{t1}, v{vc}, v{t1}
        v_lshlrev_b32 v{t1}, 4, v{t1}
        v_and_b32 v{vd}, 0x13, v{t0}
        v_bfe_u32 v{vc}, v{t0}, 2, 1
        v_lshl_or_b32 v{vd}, v{vc}, 3, v{vd}
        v_bfe_u32 v{vc}, v{t0}, 3, 1
        v_lshl_or_b32 v{vd}, v{vc}, 2, v{vd}
        v_mul_u32_u24 v{vd}, 7168, v{vd}
        v_add3_u32 v{vd}, v{vd}, v{t1}, s35
        """)

    a.c("---------------- QKV waves")
    a.e(f"""
    s_lshl_b32 s3, s25, 8
    s_lshl_b32 s35, s24, 6
    s_add_u32 s3, s3, s35
    s_lshl_b32 s3, s3, 11
    v_lshrrev_b32 v16, 3, v0
    v_lshlrev_b32 v16, 11, v16
    v_add_u32 v16, s3, v16
    v_and_b32 v17, 7, v0
    v_lshrrev_b32 v18, 4, v0
    v_xor_b32 v17, v17, v18
    v_lshlrev_b32 v19, 4, v17
    v_xor_b32 v20, 64, v19
    v_add_u32 v2, v16, v19
    v_add_u32 v3, v16, v20
    v_add_u32 v3, {8*2048 - 1024}, v3
    v_add_u32 v4, {16*2048 - 2048}, v2
    v_add_u32 v5, {16*2048 - 2048}, v3
    """)
    a.e(f"""
    s_lshl_b32 s3, s24, 4
    s_add_u32 s3, s3, 384
    v_add_u32 v16, s3, v0
    s_mul_i32 s35, s26, 224
    """)
    w1_chunk_voff(6, 16, 17, 18)
    a.e(f"""
    v_and_b32 v16, 31, v0
    s_lshl_b32 s3, s24, 13
    v_lshlrev_b32 v17, 7, v16
    v_add_u32 v17, s3, v17
    v_bfe_u32 v18, v0, 1, 3
    v_lshrrev_b32 v19, 5, v0
    v_xor_b32 v18, v18, v19
    v_lshl_add_u32 v8, v18, 4, v17
    v_xor_b32 v9, 32, v8
    v_xor_b32 v10, 64, v8
    v_xor_b32 v11, 0x60, v8
    v_lshrrev_b32 v16, 5, v0
    v_bfe_u32 v17, v0, 2, 2
    v_lshl_add_u32 v16, v16, 3, v17
    v_mul_u32_u24 v16, 192, v16
    v_bfe_u32 v17, v0, 4, 1
    v_lshl_add_u32 v16, v17, 5, v16
    v_and_b32 v17, 3, v0
    v_lshl_add_u32 v16, v17, 3, v16
    v_add_u32 v14, {WBASE}, v16
    """)
    a.e(f"""
    s_lshl_b32 s42, s24, 13
    s_lshl_b32 s32, s24, 8
    s_add_u32 s32, s32, {WBASE + 6144 + 6144}
    """)
    def x_dma(soff, m0expr_lines):
        L = list(m0expr_lines)
        out = [L + ["s_nop 0", f"buffer_load_dwordx4 v2, s[8:11], {soff} offen lds"]]
        for j in (1, 2, 3):
            out.append(f"buffer_load_dwordx4 v{2+j}, s[8:11], {soff} offen offset:{1024*j} lds")
        return out
    def q_dma(m0lines):
        return [list(m0lines) + ["s_mov_b64 exec, 0xffff", "buffer_load_dwordx4 v6, s[12:15], s29 offen lds", "s_mov_b64 exec, -1", "s_add_u32 s29, s29, s30"]]
    def flat(items):
        for it in items:
            for l in (it if isinstance(it, list) else [it]): a.e(l)
    a.e("s_mov_b32 s29, 0")
    a.e("s_mov_b32 s3, 0")
    flat(x_dma("s3", ["s_mov_b32 m0, s42"]))
    a.e("s_mov_b32 s3, 65536")
    flat(x_dma("s3", ["s_add_u32 m0, s42, 4096"])); flat(q_dma([f"s_add_u32 m0, s32, {0*WSLOT}"]))
    a.e("s_mov_b32 s3, 128")
    flat(x_dma("s3", [f"s_add_u32 m0, s42, {XSLOT}"])); flat(q_dma([f"s_add_u32 m0, s32, {1*WSLOT}"]))
    a.e(f"s_mov_b32 s3, {128+65536}")
    flat(x_dma("s3", [f"s_add_u32 m0, s42, {XSLOT+4096}"])); flat(q_dma([f"s_add_u32 m0, s32, {2*WSLOT}"]))
    a.e("s_mov_b32 s28, 256")
    a.e(f"s_add_u32 s31, s42, {2*XSLOT}")
    flat(x_dma("s28", ["s_mov_b32 m0, s31"])); flat(q_dma([f"s_add_u32 m0, s32, {3*WSLOT}"]))
    for i in range(96): a.e(f"v_mov_b32 v{V_ACC+i}, 0")
    def qkv_reads(buf, xr, woff):
        R = []
        for kk in range(2):
            for mi in range(2):
                R.append(f"ds_read_b128 {v(buf + (kk*2+mi)*4, 4)}, v{xr[kk]} offset:{4096*mi}")
            for b in range(3):
                for q in range(2):
                    R.append(f"ds_read_b64_tr_b16 {v(buf + 16 + (kk*3+b)*4 + 2*q, 2)}, v{V_WR} offset:{woff + (16*kk + 4*q)*192 + 64*b}")
        return R
    def qkv_mfma(buf):
        M = []
        for kk in range(2):
            for b in range(3):
                for mi in range(2):
                    acc = v(V_ACC + (b*2+mi)*16, 16)
                    M.append(f"v_mfma_f32_32x32x16_bf16 {acc}, {v(buf + 16 + (kk*3+b)*4, 4)}, {v(buf + (kk*2+mi)*4, 4)}, {acc}")
        return M
    a.e(f"""
    v_mov_b32 v{V_WR}, v{V_WA}
    s_mov_b32 s33, 0
    s_waitcnt vmcnt(15)
    s_barrier
    """)
    P.stamp(2); P.real(7)
    flat(qkv_reads(V_BUF[0], [8, 9], 0))
    a.label("qloop")
    a.e("s_waitcnt vmcnt(10) lgkmcnt(0)")
    a.e("s_barrier")
    other = [[f"v_add_u32 v12, s33, v10", f"v_add_u32 v13, s33, v11"]]
    other += qkv_reads(V_BUF[1], [12, 13], WSLOT)
    other += x_dma("s3", ["s_add_u32 s3, s28, 65536", "s_add_u32 m0, s31, 4096"])
    other += q_dma(["s_add_u32 m0, s32, s34"])
    flat(interleave(qkv_mfma(V_BUF[0]), other, 3))
    a.e("s_waitcnt vmcnt(10) lgkmcnt(0)")
    a.e("s_barrier")
    other = [[f"s_add_u32 s33, s33, {XSLOT}", f"s_cmp_eq_u32 s33, {3*XSLOT}", "s_cselect_b32 s33, 0, s33",
              f"s_add_u32 s43, s34, {WSLOT}", f"s_xor_b32 s34, s34, {2*WSLOT}",
              "v_add_u32 v12, s33, v8", "v_add_u32 v13, s33, v9", f"v_add_u32 v{V_WR}, s34, v{V_WA}"]]
    other += qkv_reads(V_BUF[0], [12, 13], 0)
    other += x_dma("s28", ["s_add_u32 s28, s28, 128", "s_cmp_ge_u32 s28, 2048", f"s_cselect_b32 s28, {hex(OOB)}, s28",
                           f"s_add_u32 s31, s31, {XSLOT}", f"s_cmp_ge_u32 s31, {3*XSLOT}", "s_cselect_b32 s31, s42, s31",
                           "s_mov_b32 m0, s31"])
    other += q_dma(["s_add_u32 m0, s32, s43"])
    flat(interleave(qkv_mfma(V_BUF[1]), other, 3))
    a.e(f"""
    s_sub_u32 s27, s27, 1
    s_cmp_lg_u32 s27, 0
    s_cbranch_scc1 {a.L('qloop')}
    s_waitcnt lgkmcnt(0)
    s_nop 7
    """)
    P.stamp(3); P.real(8)
    a.e(f"""
    s_lshl_b32 s3, s25, 3
    s_lshl_b32 s35, s24, 1
    s_add_u32 s3, s3, s35
    s_lshl_b32 s3, s3, 11
    s_add_u32 s3, s3, {WS_QKV}
    v_lshlrev_b32 v2, 4, v0
    v_add_u32 v2, s3, v2
    s_mul_i32 s35, s26, 3
    """)
    for b in range(3):
        a.e(f"""
        s_add_u32 s43, s35, {b}
        s_cmp_lt_u32 s43, 32
        s_cselect_b32 s44, {fx(QSCALE)}, 1.0
        s_mov_b32 s45, s44
        s_lshl_b32 s43, s43, 17
        """)
        for mi in range(2):
            acc = V_ACC + (b*2+mi)*16
            o = 32 + (b*2+mi)*8
            for i in range(8): a.e(f"v_pk_mul_f32 {v(acc+2*i,2)}, {v(acc+2*i,2)}, s[44:45]")
            for i in range(8): a.e(f"v_cvt_pk_bf16_f32 v{o+i}, v{acc+2*i}, v{acc+2*i+1}")
            for kb in range(2):
                a.e(f"buffer_store_dwordx4 {v(o+4*kb,4)}, v2, s[16:19], s43 offen offset:{mi*2048+kb*1024} {st_flags}")
    P.stamp(4)
    if prof: a.e("s_waitcnt vmcnt(0)")
    P.stamp(5); P.real(6)
    P.dump(9, 24, 16)
    a.e("s_endpgm")

    a.label("w1")
    a.c("---------------- W1 waves")
    a.e(f"""
    s_sub_u32 s24, s24, 4
    s_cmp_ge_u32 s24, 2
    s_cbranch_scc1 {a.L('w1_dmaw1')}
    """)
    srd(a, 12, 36, 1024 * 6144)
    a.e(f"""
    s_mov_b32 s30, {32*6144}
    s_mul_i32 s3, s24, 192
    s_mul_i32 s35, s26, 192
    s_mul_i32 s32, s24, 3072
    s_add_u32 s32, s32, {WBASE}
    """)
    for j in range(3):
        a.e(f"""
        v_add_u32 v16, s3, v0
        v_add_u32 v16, {64*j}, v16
        v_mul_u32_u24 v17, {m12}, v16
        v_lshrrev_b32 v17, {sh12}, v17
        v_mul_u32_u24 v18, 12, v17
        v_sub_u32 v18, v16, v18
        v_lshlrev_b32 v18, 4, v18
        v_mul_u32_u24 v17, 6144, v17
        v_add3_u32 v{2+j}, v17, v18, s35
        v_subrev_u32 v{2+j}, {1024*j}, v{2+j}
        """)
    a.e(f"s_branch {a.L('w1_go')}")
    a.label("w1_dmaw1")
    a.e(f"""
    s_sub_u32 s3, s24, 2
    s_mul_i32 s32, s3, 3072
    s_add_u32 s32, s32, {WBASE + 6144}
    s_mul_i32 s3, s3, 192
    s_mul_i32 s35, s26, 224
    """)
    for j in range(3):
        a.e(f"v_add_u32 v16, s3, v0")
        a.e(f"v_add_u32 v16, {64*j}, v16")
        w1_chunk_voff(2 + j, 16, 17, 18)
        a.e(f"v_subrev_u32 v{2+j}, {1024*j}, v{2+j}")
    a.label("w1_go")
    def w_dma(m0lines):
        out = [list(m0lines) + ["s_nop 0", "buffer_load_dwordx4 v2, s[12:15], s29 offen lds"]]
        out.append("buffer_load_dwordx4 v3, s[12:15], s29 offen offset:1024 lds")
        out.append(["buffer_load_dwordx4 v4, s[12:15], s29 offen offset:2048 lds", "s_add_u32 s29, s29, s30"])
        return out
    a.e(f"""
    v_lshrrev_b32 v16, 4, v0
    v_lshlrev_b32 v16, 3, v16
    s_mul_i32 s3, s26, 224
    """)
    for t in range(7):
        a.e(f"buffer_load_dwordx2 {v(76+2*t,2)}, v16, s[20:23], s3 offen offset:{32*t}")
    a.e("s_mov_b32 s29, 0")
    for u in range(4): flat(w_dma([f"s_add_u32 m0, s32, {u*WSLOT}"]))
    a.e(f"""
    v_and_b32 v16, 15, v0
    s_lshl_b32 s3, s24, 13
    v_lshlrev_b32 v17, 7, v16
    v_add_u32 v17, s3, v17
    v_bfe_u32 v18, v0, 1, 3
    v_lshrrev_b32 v19, 4, v0
    v_xor_b32 v18, v18, v19
    v_lshl_add_u32 v8, v18, 4, v17
    v_xor_b32 v9, 64, v8
    v_lshrrev_b32 v16, 5, v0
    v_lshlrev_b32 v16, 4, v16
    v_bfe_u32 v17, v0, 4, 1
    v_lshl_add_u32 v16, v17, 2, v16
    v_bfe_u32 v17, v0, 2, 2
    v_add_u32 v16, v16, v17
    v_mul_u32_u24 v16, 224, v16
    v_and_b32 v17, 3, v0
    v_lshl_add_u32 v16, v17, 3, v16
    v_add_u32 v14, {WBASE + 6144}, v16
    v_mov_b32 v{V_WR}, v14
    s_mov_b32 s33, 0
    s_waitcnt vmcnt(12)
    """)
    for t in range(7):
        for mi in range(4):
            acc = V_ACC + (t*4+mi)*4
            a.e(f"v_lshlrev_b32 v{acc}, 16, v{76+2*t}")
            a.e(f"v_and_b32 v{acc+1}, 0xffff0000, v{76+2*t}")
            a.e(f"v_lshlrev_b32 v{acc+2}, 16, v{77+2*t}")
            a.e(f"v_and_b32 v{acc+3}, 0xffff0000, v{77+2*t}")
    def w1_reads(buf, xr, woff):
        R = []
        for mi in range(4):
            R.append(f"ds_read_b128 {v(buf + mi*4, 4)}, v{xr} offset:{2048*mi}")
        for t in range(7):
            for q in range(2):
                R.append(f"ds_read_b64_tr_b16 {v(buf + 16 + t*4 + 2*q, 2)}, v{V_WR} offset:{woff + 1792*q + 32*t}")
        return R
    def w1_mfma(buf):
        M = []
        for t in range(7):
            for mi in range(4):
                acc = v(V_ACC + (t*4+mi)*4, 4)
                M.append(f"v_mfma_f32_16x16x32_bf16 {acc}, {v(buf + 16 + t*4, 4)}, {v(buf + mi*4, 4)}, {acc}")
        return M
    a.e("s_waitcnt vmcnt(9)")
    a.e("s_barrier")
    P.stamp(2); P.real(7)
    flat(w1_reads(V_BUF[0], 8, 0))
    a.label("wloop")
    a.e("s_waitcnt vmcnt(6) lgkmcnt(0)")
    a.e("s_barrier")
    other = [["v_add_u32 v12, s33, v9"]]
    other += w1_reads(V_BUF[1], 12, WSLOT)
    other += w_dma(["s_add_u32 m0, s32, s34"])
    flat(interleave(w1_mfma(V_BUF[0]), other, 1))
    a.e("s_waitcnt vmcnt(6) lgkmcnt(0)")
    a.e("s_barrier")
    other = [[f"s_add_u32 s33, s33, {XSLOT}", f"s_cmp_eq_u32 s33, {3*XSLOT}", "s_cselect_b32 s33, 0, s33",
              f"s_add_u32 s43, s34, {WSLOT}", f"s_xor_b32 s34, s34, {2*WSLOT}",
              "v_add_u32 v12, s33, v8", f"v_add_u32 v{V_WR}, s34, v{V_WA}"]]
    other += w1_reads(V_BUF[0], 12, 0)
    other += w_dma(["s_add_u32 m0, s32, s43"])
    flat(interleave(w1_mfma(V_BUF[1]), other, 1))
    a.e(f"""
    s_sub_u32 s27, s27, 1
    s_cmp_lg_u32 s27, 0
    s_cbranch_scc1 {a.L('wloop')}
    s_waitcnt lgkmcnt(0)
    s_nop 7
    """)
    P.stamp(3); P.real(8)
    c0 = -2.0 * math.sqrt(2.0 / math.pi) * math.log2(math.e)
    c1 = c0 * 0.044715
    a.e(f"""
    s_lshl_b32 s3, s25, 3
    s_lshl_b32 s35, s24, 1
    s_add_u32 s3, s3, s35
    s_mul_i32 s3, s3, {AH_RB}
    s_mul_i32 s35, s26, 7168
    s_add_u32 s3, s3, s35
    s_add_u32 s3, s3, {WS_AH + 64*1024}
    v_bfe_u32 v16, v0, 4, 1
    v_lshlrev_b32 v16, 5, v16
    v_lshrrev_b32 v17, 5, v0
    v_lshl_add_u32 v16, v17, 4, v16
    v_and_b32 v17, 15, v0
    v_add_u32 v16, v16, v17
    v_lshlrev_b32 v2, 4, v16
    v_add_u32 v2, s3, v2
    s_mov_b32 s44, {fx(c0)}
    s_mov_b32 s45, s44
    s_mov_b32 s46, {fx(c1)}
    s_mov_b32 s47, s46
    v_mov_b32 v4, s44
    v_mov_b32 v5, s44
    s_mov_b32 s48, 0
    s_mov_b32 s49, {AH_RB}
    """)
    for t in range(7):
        for mp in range(2):
            acc = V_ACC + (t*4 + 2*mp)*4
            T = 32 + ((t*2+mp) % 2) * 16
            for i in range(4): a.e(f"v_pk_mul_f32 {v(T+2*i,2)}, {v(acc+2*i,2)}, {v(acc+2*i,2)}")
            for i in range(4): a.e(f"v_pk_fma_f32 {v(T+2*i,2)}, {v(T+2*i,2)}, s[46:47], v[4:5]")
            for i in range(4): a.e(f"v_pk_mul_f32 {v(T+2*i,2)}, {v(T+2*i,2)}, {v(acc+2*i,2)}")
            for i in range(8): a.e(f"v_exp_f32 v{T+i}, v{T+i}")
            for i in range(4): a.e(f"v_pk_add_f32 {v(T+2*i,2)}, {v(T+2*i,2)}, 1.0 op_sel_hi:[1,0]")
            for i in range(8): a.e(f"v_rcp_f32 v{T+i}, v{T+i}")
            for i in range(4): a.e(f"v_pk_mul_f32 {v(T+2*i,2)}, {v(T+2*i,2)}, {v(acc+2*i,2)}")
            for i in range(4): a.e(f"v_cvt_pk_bf16_f32 v{T+8+i}, v{T+2*i}, v{T+2*i+1}")
            a.e("s_nop 1")
            a.e(f"v_permlane32_swap_b32 v{T+8}, v{T+10}")
            a.e(f"v_permlane32_swap_b32 v{T+9}, v{T+11}")
            off = t * 1024
            if off < 4096:
                a.e(f"buffer_store_dwordx4 {v(T+8,4)}, v2, s[16:19], s{48+mp} offen offset:{off} {st_flags}")
            else:
                if t == 4 and mp == 0:
                    a.e("s_add_u32 s48, s48, 4096")
                    a.e("s_add_u32 s49, s49, 4096")
                a.e(f"buffer_store_dwordx4 {v(T+8,4)}, v2, s[16:19], s{48+mp} offen offset:{off-4096} {st_flags}")
    P.stamp(4)
    if prof: a.e("s_waitcnt vmcnt(0)")
    P.stamp(5); P.real(6)
    if prof: a.e("s_add_u32 s24, s24, 4")
    P.dump(9, 24, 16)
    a.label("end")
    a.e("s_endpgm")
    txt = a.text()
    if dbg:
        out = []; inloop = False
        for l in txt.split("\n"):
            if l.startswith("g1_qloop:") or l.startswith("g1_wloop:"): inloop = True
            if inloop and "s_cbranch_scc1 g1_" in l and "loop" in l: inloop = False
            if inloop:
                if "nodma" in dbg and " lds" in l and "buffer_load" in l: continue
                if "nobar" in dbg and "s_barrier" in l: continue
                if "noread" in dbg and "ds_read" in l: continue
                if "nomfma" in dbg and "v_mfma" in l: continue
            out.append(l)
        txt = "\n".join(out)
    return txt, 256
```

```python
from common import *

G2_SLOT = 16384
G2_LDS = 8 * 8704
RS = 272

def gen_gemm2(prof=False):
    a = Asm("g2")
    P = Prof(a, prof, 3)
    P.real(0); P.stamp(1)
    NST = 36
    a.e(f"""
    s_cmp_ge_u32 s2, 256
    s_cbranch_scc1 {a.L('end')}
    s_load_dwordx2 s[4:5], s[0:1], {KA_X}
    s_load_dwordx2 s[6:7], s[0:1], {KA_WS}
    s_load_dwordx2 s[36:37], s[0:1], {KA_WO}
    s_load_dwordx2 s[38:39], s[0:1], {KA_W2}
    s_load_dwordx2 s[40:41], s[0:1], {KA_B2}
    s_load_dwordx2 s[42:43], s[0:1], {KA_OUT}
    v_lshrrev_b32 v1, 6, v0
    v_and_b32 v0, 63, v0
    s_and_b32 s3, s2, 7
    v_readfirstlane_b32 s24, v1
    s_lshr_b32 s35, s2, 3
    s_lshr_b32 s25, s3, 1
    s_lshl_b32 s25, s25, 2
    s_and_b32 s27, s35, 3
    s_add_u32 s25, s25, s27
    s_and_b32 s26, s3, 1
    s_lshl_b32 s26, s26, 3
    s_lshr_b32 s27, s35, 2
    s_add_u32 s26, s26, s27
    s_waitcnt lgkmcnt(0)
    """)
    srd(a, 16, 6, WS_BYTES)
    srd(a, 12, 36, 1024 * 2048)
    a.e(f"""
    s_and_b32 s3, s24, 3
    s_lshl_b32 s35, s25, 2
    s_add_u32 s3, s3, s35
    s_mul_i32 s28, s3, {AH_RB}
    s_lshr_b32 s35, s24, 2
    s_lshl_b32 s35, s35, 12
    s_add_u32 s28, s28, s35
    s_add_u32 s28, s28, {WS_AH}
    v_lshlrev_b32 v3, 4, v0
    """)
    a.e(f"""
    v_lshrrev_b32 v4, 3, v0
    v_lshlrev_b32 v4, 11, v4
    v_bfe_u32 v5, v0, 4, 1
    v_lshlrev_b32 v5, 2, v5
    v_and_b32 v6, 7, v0
    v_xor_b32 v5, v5, v6
    v_lshl_add_u32 v4, v5, 4, v4
    s_lshl_b32 s3, s24, 15
    s_lshl_b32 s35, s26, 7
    s_add_u32 s3, s3, s35
    v_add_u32 v4, s3, v4
    v_add_u32 v5, {8*2048 - 1024}, v4
    s_lshl_b32 s32, s24, 11
    s_mov_b32 s29, 0
    s_mov_b32 s30, 0
    """)
    a.e(f"""
    v_lshrrev_b32 v8, 5, v0
    v_bfe_u32 v9, v0, 2, 2
    v_lshl_add_u32 v8, v8, 2, v9
    v_lshlrev_b32 v8, 7, v8
    v_bfe_u32 v9, v0, 3, 1
    v_lshl_add_u32 v8, v9, 6, v8
    v_bfe_u32 v9, v0, 4, 1
    v_lshl_add_u32 v8, v9, 5, v8
    v_and_b32 v9, 3, v0
    v_lshl_add_u32 v8, v9, 3, v8
    s_lshr_b32 s35, s24, 2
    s_lshl_b32 s35, s35, 13
    v_add_u32 v6, s35, v8
    v_xor_b32 v7, 64, v6
    """)
    VA = 32
    VW = 96
    VACC = 128
    def group(slot):
        L = []
        L.append([f"s_add_u32 m0, s32, {slot*G2_SLOT}", "s_nop 0", "buffer_load_dwordx4 v4, s[12:15], s29 offen lds"])
        L.append("buffer_load_dwordx4 v5, s[12:15], s29 offen offset:1024 lds")
        for i in range(4):
            L.append(f"buffer_load_dwordx4 {v(VA+slot*16+4*i,4)}, v3, s[16:19], s28 offen offset:{1024*i}")
        L.append([f"s_add_u32 s29, s29, {128*2048}", "s_add_u32 s28, s28, 8192", "s_add_u32 s30, s30, 1",
                  "s_cmp_eq_u32 s30, 8", "s_cselect_b32 s12, s38, s12", "s_cselect_b32 s13, s39, s13",
                  f"s_cselect_b32 s14, {3584*2048}, s14", "s_cselect_b32 s29, 0, s29",
                  f"s_cmp_ge_u32 s30, {NST}", "s_cselect_b32 s28, 0x40000000, s28"])
        return L
    def flat(items):
        for it in items:
            for l in (it if isinstance(it, list) else [it]): a.e(l)
    for st in range(3): flat(group(st))
    for i in range(32): a.e(f"v_mov_b32 v{VACC+i}, 0")
    a.e(f"s_mov_b32 s34, {NST//4}")
    P.stamp(2); P.real(7)
    a.label("loop")
    for sl in range(4):
        a.e("s_waitcnt vmcnt(12)")
        a.e("s_barrier")
        R = []
        for st in range(4):
            for b in range(2):
                for q in range(2):
                    R.append(f"ds_read_b64_tr_b16 {v(VW+(st*2+b)*4+2*q,2)}, v{6+b} offset:{sl*G2_SLOT + (16*st+8*q)*128}")
        flat(R[:8])
        g = group((sl + 3) % 4)
        flat(g[:2])
        flat(R[8:])
        flat(g[2:])
        for st in range(4):
            a.e(f"s_waitcnt lgkmcnt({12-4*st})")
            for b in range(2):
                acc = v(VACC + 16*b, 16)
                a.e(f"v_mfma_f32_32x32x16_bf16 {acc}, {v(VW+(st*2+b)*4,4)}, {v(VA+sl*16+4*st,4)}, {acc}")
    a.e(f"""
    s_sub_u32 s34, s34, 1
    s_cmp_lg_u32 s34, 0
    s_cbranch_scc1 {a.L('loop')}
    s_waitcnt vmcnt(0)
    s_barrier
    """)
    P.stamp(3); P.real(8)
    srd(a, 8, 4, 2048 * 2048)
    srd(a, 20, 40, 2048)
    srd(a, 12, 42, 2048 * 2048)
    a.e(f"""
    s_lshl_b32 s3, s25, 7
    s_lshl_b32 s35, s24, 4
    s_add_u32 s3, s3, s35
    s_lshl_b32 s3, s3, 11
    s_lshl_b32 s35, s26, 7
    s_add_u32 s3, s3, s35
    v_lshrrev_b32 v8, 3, v0
    v_lshlrev_b32 v9, 11, v8
    v_and_b32 v10, 7, v0
    v_lshl_add_u32 v9, v10, 4, v9
    v_add_u32 v9, s3, v9
    v_add_u32 v11, 16384, v9
    v_lshlrev_b32 v12, 4, v10
    buffer_load_dwordx4 v[32:35], v9, s[8:11], 0 offen
    buffer_load_dwordx4 v[36:39], v11, s[8:11], 0 offen
    buffer_load_dwordx4 v[40:43], v12, s[20:23], s35 offen
    """)
    a.e(f"""
    v_and_b32 v13, 31, v0
    v_mul_u32_u24 v13, {RS}, v13
    v_lshrrev_b32 v14, 5, v0
    v_lshl_add_u32 v13, v14, 4, v13
    s_mul_i32 s3, s24, 8704
    v_add_u32 v13, s3, v13
    """)
    for b in range(2):
        for i in range(4):
            a.e(f"ds_write_b128 v13, {v(VACC+16*b+4*i,4)} offset:{(32*b+8*i)*4}")
    a.e(f"""
    s_lshr_b32 s3, s24, 1
    s_mul_i32 s3, s3, 8704
    s_and_b32 s35, s24, 1
    s_mul_i32 s35, s35, {16*RS}
    s_add_u32 s3, s3, s35
    v_mul_u32_u24 v13, {RS}, v8
    v_lshl_add_u32 v13, v10, 5, v13
    v_add_u32 v13, s3, v13
    s_waitcnt lgkmcnt(0)
    s_barrier
    """)
    for p in range(2):
        for kh in range(2):
            for j in range(2):
                a.e(f"ds_read_b128 {v(64+p*16+kh*8+4*j,4)}, v13 offset:{p*8*RS + kh*4*8704 + 16*j}")
    a.e("s_waitcnt vmcnt(0)")
    for i in range(4):
        a.e(f"v_lshlrev_b32 v{44+2*i}, 16, v{40+i}")
        a.e(f"v_and_b32 v{45+2*i}, 0xffff0000, v{40+i}")
    for p in range(2):
        for i in range(4):
            a.e(f"v_lshlrev_b32 v{52+2*i}, 16, v{32+4*p+i}")
            a.e(f"v_and_b32 v{53+2*i}, 0xffff0000, v{32+4*p+i}")
        for i in range(8): a.e(f"v_add_f32 v{52+i}, v{52+i}, v{44+i}")
        a.e(f"s_waitcnt lgkmcnt({4-4*p})")
        for i in range(8): a.e(f"v_add3_f32_NOPE" if False else f"v_add_f32 v{64+p*16+i}, v{64+p*16+i}, v{64+p*16+8+i}")
        for i in range(8): a.e(f"v_add_f32 v{52+i}, v{52+i}, v{64+p*16+i}")
        for i in range(4): a.e(f"v_cvt_pk_bf16_f32 v{100+4*p+i}, v{52+2*i}, v{53+2*i}")
        a.e(f"buffer_store_dwordx4 {v(100+4*p,4)}, v{9 if p == 0 else 11}, s[12:15], 0 offen")
    P.stamp(4)
    if prof: a.e("s_waitcnt vmcnt(0)")
    P.stamp(5); P.real(6)
    P.dump(9, 24, 16, vt=30)
    a.label("end")
    a.e("s_endpgm")
    return a.text(), 160
```

```python
from common import *

def gen_ln():
    a = Asm("ln")
    a.e(f"""
    s_cmp_ge_u32 s2, 256
    s_cbranch_scc1 {a.L('end')}
    s_load_dwordx2 s[4:5], s[0:1], {KA_X}
    s_load_dwordx2 s[6:7], s[0:1], {KA_WS}
    s_lshl_b32 s3, s2, 14
    v_lshrrev_b32 v1, 6, v0
    v_and_b32 v2, 63, v0
    v_lshlrev_b32 v1, 11, v1
    v_lshlrev_b32 v2, 4, v2
    v_add3_u32 v1, v1, v2, s3
    s_waitcnt lgkmcnt(0)
    """)
    srd(a, 8, 4, 2048 * 2048)
    srd(a, 12, 6, 2048 * 2048)
    a.e("""
    buffer_load_dwordx4 v[4:7], v1, s[8:11], 0 offen
    buffer_load_dwordx4 v[8:11], v1, s[8:11], 0 offen offset:1024
    s_waitcnt vmcnt(0)
    """)
    for i in range(8):
        a.e(f"v_lshlrev_b32 v{16+2*i}, 16, v{4+i}")
        a.e(f"v_and_b32 v{17+2*i}, 0xffff0000, v{4+i}")
    a.e("v_add_f32 v12, v16, v17")
    for i in range(2, 16): a.e(f"v_add_f32 v12, v12, v{16+i}")
    wave_sum(a, 12, 20)
    a.e("s_nop 1")
    a.e(f"v_mov_b32 v13, {fx(1.0/1024)}")
    a.e("v_mul_f32 v13, s20, v13")
    for i in range(16): a.e(f"v_sub_f32 v{16+i}, v{16+i}, v13")
    a.e("v_mul_f32 v12, v16, v16")
    for i in range(1, 16): a.e(f"v_fmac_f32 v12, v{16+i}, v{16+i}")
    wave_sum(a, 12, 21)
    a.e("s_nop 1")
    a.e(f"v_mov_b32 v13, {fx(1.0/1024)}")
    a.e(f"v_mov_b32 v14, {fx(1e-5)}")
    a.e("v_fma_f32 v13, s21, v13, v14")
    a.e("v_rsq_f32 v13, v13")
    a.e("s_nop 0")
    for i in range(16): a.e(f"v_mul_f32 v{16+i}, v{16+i}, v13")
    for i in range(8): a.e(f"v_cvt_pk_bf16_f32 v{4+i}, v{16+2*i}, v{17+2*i}")
    a.e("""
    buffer_store_dwordx4 v[4:7], v1, s[12:15], 0 offen
    buffer_store_dwordx4 v[8:11], v1, s[12:15], 0 offen offset:1024
    """)
    a.label("end")
    a.e("s_endpgm")
    return a.text(), 32
```

```python
import re

class Asm:
    def __init__(self, prefix):
        self.lines = []
        self.prefix = prefix
        self.nlab = 0
    def e(self, s):
        for l in s.strip().split("\n"):
            l = l.strip()
            if l: self.lines.append("    " + l)
    def c(self, s):
        self.lines.append("    ; " + s)
    def label(self, name):
        self.lines.append(f"{self.prefix}_{name}:")
    def L(self, name):
        return f"{self.prefix}_{name}"
    def text(self):
        return "\n".join(self.lines) + "\n"

def v(i, n=1):
    return f"v{i}" if n == 1 else f"v[{i}:{i+n-1}]"
def s(i, n=1):
    return f"s{i}" if n == 1 else f"s[{i}:{i+n-1}]"

def kernel_text(name, body, nvgpr, nsgpr=102):
    nv = (nvgpr + 3) // 4 * 4
    return f""".text
.globl {name}
.p2align 8
.type {name},@function
{name}:
{body}
.section .rodata,"a"
.p2align 6
.amdhsa_kernel {name}
  .amdhsa_next_free_vgpr {nvgpr}
  .amdhsa_next_free_sgpr {nsgpr}
  .amdhsa_accum_offset {nv}
  .amdhsa_group_segment_fixed_size 0
  .amdhsa_kernarg_size 88
  .amdhsa_user_sgpr_count 2
  .amdhsa_user_sgpr_kernarg_segment_ptr 1
  .amdhsa_system_sgpr_workgroup_id_x 1
  .amdhsa_float_denorm_mode_32 3
.end_amdhsa_kernel
"""

_reg = re.compile(r"\b([vsa])(\d+)\b|\b([vsa])\[(\d+):(\d+)\]|\b(vcc|exec|m0|scc)\b")
def regs_of(op):
    out = set()
    for m in _reg.finditer(op):
        if m.group(1): out.add((m.group(1), int(m.group(2))))
        elif m.group(3):
            for i in range(int(m.group(4)), int(m.group(5)) + 1): out.add((m.group(3), i))
        else: out.add((m.group(6), 0))
    return out

TRANS = ("v_exp_", "v_log_", "v_rcp_", "v_rsq_", "v_sqrt_", "v_sin_", "v_cos_")
def parse(line):
    line = line.split(";")[0].strip()
    if not line or line.endswith(":") or line.startswith("."): return None
    parts = line.split(None, 1)
    mn = parts[0]
    ops = [o.strip() for o in parts[1].split(",")] if len(parts) > 1 else []
    d = dict(mn=mn, ops=ops, line=line)
    isv = mn.startswith("v_")
    d["mfma"] = mn.startswith("v_mfma")
    d["valu"] = isv and not d["mfma"]
    d["trans"] = mn.startswith(TRANS)
    d["vmem"] = mn.startswith(("buffer_", "global_", "flat_"))
    d["ds"] = mn.startswith("ds_")
    d["salu"] = mn.startswith("s_")
    w, r = set(), set()
    if d["mfma"]:
        w = regs_of(ops[0]); d["A"] = regs_of(ops[1]); d["B"] = regs_of(ops[2]); d["C"] = regs_of(ops[3])
        r = d["A"] | d["B"] | d["C"]
        d["passes"] = 8 if "32x32" in mn else 4
    elif isv:
        if mn.startswith("v_cmp"):
            w = regs_of(ops[0]); r = set().union(*[regs_of(o) for o in ops[1:]])
        elif "permlane" in mn and "swap" in mn:
            w = regs_of(ops[0]) | regs_of(ops[1]); r = set(w)
        elif mn.startswith(("v_add_co", "v_sub_co", "v_addc", "v_subb")):
            w = regs_of(ops[0]) | regs_of(ops[1]); r = set().union(*[regs_of(o) for o in ops[2:]])
        else:
            w = regs_of(ops[0]); r = set().union(*[regs_of(o) for o in ops[1:]]) if len(ops) > 1 else set()
            if mn.startswith(("v_fmac", "v_dot2c")) or "_dpp" in mn or "row_" in line or "quad_perm" in line: r |= w
    elif d["vmem"]:
        if "store" in mn or ("atomic" in mn):
            r = set().union(*[regs_of(o) for o in ops])
            d["sdata"] = regs_of(ops[0]) if mn.startswith("buffer_") else regs_of(ops[1])
            if "atomic" in mn and " sc0" in line: w = regs_of(ops[0])
        elif " lds" in line:
            r = set().union(*[regs_of(o) for o in ops]) | {("m0", 0)}
        else:
            w = regs_of(ops[0]); r = set().union(*[regs_of(o) for o in ops[1:]])
    elif d["ds"]:
        if mn.startswith(("ds_write", "ds_add", "ds_or", "ds_max")):
            r = set().union(*[regs_of(o) for o in ops])
        else:
            w = regs_of(ops[0]); r = set().union(*[regs_of(o) for o in ops[1:]])
    elif d["salu"]:
        if mn.startswith(("s_cmp", "s_waitcnt", "s_barrier", "s_nop", "s_branch", "s_cbranch", "s_endpgm", "s_setprio", "s_sleep", "s_bitcmp")):
            r = set().union(*[regs_of(o) for o in ops]) if ops else set()
        else:
            w = regs_of(ops[0]); r = set().union(*[regs_of(o) for o in ops[1:]]) if len(ops) > 1 else set()
            if "saveexec" in mn: w |= {("exec", 0)}
    d["w"], d["r"] = w, r
    d["states"] = int(ops[0], 0) + 1 if mn == "s_nop" else 1
    d["dpp"] = isv and ("row_" in line or "quad_perm" in line or "_dpp" in mn)
    return d

def need(p, c):
    n = 0
    vw = {x for x in p["w"] if x[0] in "va"}
    sw = {x for x in p["w"] if x[0] == "s" or x[0] == "vcc"}
    if p["valu"]:
        if c["mfma"] and vw & c["r"]: n = max(n, 2)
        if c["valu"] and c["dpp"] and vw & c["r"]: n = max(n, 2)
        if c["mn"].startswith(("v_readfirstlane", "v_readlane")) and vw & c["r"]: n = max(n, 1)
        if "permlane" in c["mn"] and vw & c["r"]: n = max(n, 2)
        if p["trans"] and c["valu"] and not c["trans"] and vw & c["r"]: n = max(n, 1)
        if p["trans"] and c["mfma"] and vw & c["r"]: n = max(n, 2)
        if sw and c["valu"] and sw & c["r"]: n = max(n, 2)
        if sw and c["vmem"] and sw & c["r"]: n = max(n, 5)
        if sw and c["mn"].startswith(("v_readlane", "v_writelane")) and sw & c["r"]: n = max(n, 4)
        if ("exec", 0) in p["w"] and (c["mfma"] or "permlane" in c["mn"] or c["mn"].startswith("v_read")): n = max(n, 4)
        if ("exec", 0) in p["w"] and c["dpp"]: n = max(n, 5)
    if p["mfma"]:
        big = 12 if p["passes"] == 8 else 8
        if c["mfma"]:
            if p["w"] & (c["A"] | c["B"]): n = max(n, big)
            if p["w"] & c["C"]:
                if not (p["w"] == c["C"] and p["passes"] == c["passes"]): n = max(n, 10 if p["passes"] == 8 else 6)
            elif p["w"] & c["w"]: n = max(n, big)
        elif (c["valu"] or c["vmem"] or c["ds"]) and p["w"] & (c["r"] | c["w"]): n = max(n, big)
        if c["valu"] and p["C"] & c["w"]: n = max(n, 7 if p["passes"] == 8 else 3)
    if p["salu"] and ("m0", 0) in p["w"] and c["vmem"] and ("m0", 0) in c["r"]: n = max(n, 1)
    if p["vmem"] and "sdata" in p and ("x4" in p["mn"] or "x3" in p["mn"]):
        if p["sdata"] & c["w"]: n = max(n, 2 if c["valu"] else 1)
    return n

def check_hazards(text, name=""):
    lines = text.split("\n")
    ins, labels = [], {}
    for ln in lines:
        t = ln.split(";")[0].strip()
        if t.endswith(":"): labels[t[:-1]] = len(ins); continue
        d = parse(ln)
        if d: ins.append(d)
    errs = []
    W = 24
    def succs(i):
        d = ins[i]
        mn = d["mn"]
        if mn == "s_endpgm": return []
        if mn == "s_branch": return [labels[d["ops"][0]]]
        if mn.startswith("s_cbranch"): return [i + 1, labels[d["ops"][0]]]
        return [i + 1]
    for i, p in enumerate(ins):
        if not (p["valu"] or p["mfma"] or p["vmem"] or (p["salu"] and ("m0", 0) in p["w"])): continue
        stack = [(j, 0) for j in succs(i)]
        seen = {}
        while stack:
            j, dist = stack.pop()
            if j >= len(ins) or dist >= 13: continue
            if seen.get(j, 99) <= dist: continue
            seen[j] = dist
            c = ins[j]
            n = need(p, c)
            if n > dist: errs.append(f"[{name}] need {n} got {dist}: '{p['line']}' -> '{c['line']}'")
            for k in succs(j): stack.append((k, dist + c["states"]))
    return errs

def autowait(seq, cyclic=True, gap=0):
    def sim(items):
        st = {"l": dict(n=0, c=0, last={}, pos=[]), "v": dict(n=0, c=0, last={}, pos=[])}
        waits = []
        for idx, it in enumerate(items):
            if it.startswith("LABEL:"):
                waits.append((None, None)); continue
            d = parse(it)
            rs = d["r"] | d["w"]
            res = []
            for key in ("l", "v"):
                S = st[key]
                own = (d["ds"] if key == "l" else d["vmem"])
                use = d["r"] if own else rs
                need = max([S["last"].get(r, 0) for r in use], default=0)
                w = None
                if need > S["c"]:
                    if key == "l" and gap:
                        older = [k + 1 for k, p in enumerate(S["pos"]) if p <= idx - gap]
                        if older: need = max(need, older[-1])
                    w = S["n"] - need; S["c"] = need
                if d["mn"] == "s_waitcnt":
                    m = re.search(r"lgkmcnt\((\d+)\)" if key == "l" else r"vmcnt\((\d+)\)", it)
                    if m: S["c"] = max(S["c"], S["n"] - int(m.group(1)))
                if own:
                    S["n"] += 1; S["pos"].append(idx)
                    for r in d["w"]: S["last"][r] = S["n"]
                res.append(w)
            waits.append(tuple(res))
        return waits
    L = len(seq)
    mn = lambda x, y: y if x is None else (x if y is None else min(x, y))
    if cyclic:
        w = sim(seq * 4)
        assert w[2*L:3*L] == w[3*L:], "wait pattern not periodic"
        fin = w[2*L:3*L]
    else:
        fin = sim(seq)
    out = []
    for it, (x, y) in zip(seq, fin):
        parts = []
        if y is not None: parts.append(f"vmcnt({y})")
        if x is not None:
            parts.append(f"lgkmcnt({min(x, 15)})")
        if parts: out.append("s_waitcnt " + " ".join(parts))
        out.append(it)
    return out
```

```python
import math, struct
from asmlib import *

KA_X, KA_WQKV, KA_WO, KA_BX, KA_W1, KA_B1, KA_W2, KA_B2, KA_OUT, KA_DBG, KA_WS = [8*i for i in range(11)]
WS_XN   = 0x0000000
WS_QKV  = 0x0400000
WS_AH   = 0x1000000
AH_RB   = 288 * 1024
WS_P    = 0x2400000
WS_BYTES = 0x10000000

def f2u(x):
    return struct.unpack("<I", struct.pack("<f", x))[0]
def fx(x):
    return hex(f2u(x))

def srd(a, d, lo, nbytes):
    a.e(f"s_mov_b32 s{d}, s{lo}")
    a.e(f"s_mov_b32 s{d+1}, s{lo+1}")
    a.e(f"s_mov_b32 s{d+2}, {hex(nbytes)}")
    a.e(f"s_mov_b32 s{d+3}, 0x00020000")

def wave_sum(a, vr, sdst):
    for sh in (1, 2, 4, 8):
        a.e("s_nop 1")
        a.e(f"v_add_f32_dpp v{vr}, v{vr}, v{vr} row_shr:{sh} row_mask:0xf bank_mask:0xf bound_ctrl:0")
    a.e("s_nop 1")
    a.e(f"v_add_f32_dpp v{vr}, v{vr}, v{vr} row_bcast:15 row_mask:0xa bank_mask:0xf")
    a.e("s_nop 1")
    a.e(f"v_add_f32_dpp v{vr}, v{vr}, v{vr} row_bcast:31 row_mask:0xc bank_mask:0xf")
    a.e("s_nop 0")
    a.e(f"v_readlane_b32 s{sdst}, v{vr}, 63")

def interleave(main, other, per, start=0):
    out = []
    k = 0
    for i, m in enumerate(main):
        out.append(m)
        if i >= start:
            n = per[min(i - start, len(per) - 1)] if isinstance(per, (list, tuple)) else per
            for _ in range(n):
                if k < len(other):
                    it = other[k]; k += 1
                    out += it if isinstance(it, list) else [it]
    while k < len(other):
        it = other[k]; k += 1
        out += it if isinstance(it, list) else [it]
    return out

WS_PROF = 0x8000000
class Prof:
    def __init__(self, a, on, kidx=0):
        self.a, self.on, self.n, self.kidx = a, on, 0, kidx
    def stamp(self, i):
        if not self.on: return
        self.a.e(f"s_memtime s[{60+2*i}:{61+2*i}]")
    def real(self, i):
        if not self.on: return
        self.a.e(f"s_memrealtime s[{60+2*i}:{61+2*i}]")
    def dump(self, n, swave, srd_ws, vt=16):
        if not self.on: return
        a = self.a
        a.e("s_waitcnt lgkmcnt(0)")
        a.e(f"s_add_u32 s90, s2, {self.kidx*1024}")
        a.e("s_lshl_b32 s90, s90, 4")
        a.e(f"s_add_u32 s90, s90, s{swave}")
        a.e("s_lshl_b32 s90, s90, 6")
        a.e(f"s_add_u32 s90, s90, {WS_PROF}")
        a.e(f"v_mov_b32 v{vt+1}, 0")
        for i in range(n):
            a.e(f"v_mov_b32 v{vt}, s{60+2*i}")
            a.e(f"buffer_store_dword v{vt}, v{vt+1}, s[{srd_ws}:{srd_ws+3}], s90 offen offset:{4*i}")
            a.e("s_nop 0")


def prefetch(a, ka_off, nbytes, sg, vt, nthreads_total, vtid):
    a.e(f"s_load_dwordx2 s[{sg+4}:{sg+5}], s[0:1], {ka_off}")
    a.e(f"v_lshlrev_b32 v{vt+1}, 7, v{vtid}")
    a.e("s_waitcnt lgkmcnt(0)")
    srd(a, sg, sg + 4, nbytes)
    n = (nbytes // 128 + nthreads_total - 1) // nthreads_total
    for i in range(n):
        a.e(f"s_mov_b32 s{sg+4}, {i * nthreads_total * 128}")
        a.e(f"buffer_load_dword v{vt}, v{vt+1}, s[{sg}:{sg+3}], s{sg+4} offen")
```

```python
from common import *

AT_RING = 65536
AT_PRIV = AT_RING
AT_LDS = AT_RING + 8 * 2048
OOB = 0x40000000

VQ, VNEG, VS, VP, VK, VV, VO, VL, VONE = 4, 12, [32, 48], 64, 72, 80, 96, 112, 116

def gen_attn(st_flags="", prof=False, force_fallback=False, pf=False):
    a = Asm("at")
    P = Prof(a, prof, 2)
    P.real(0); P.stamp(1)
    a.e(f"""
    s_cmp_ge_u32 s2, 256
    s_cbranch_scc1 {a.L('end')}
    s_load_dwordx2 s[6:7], s[0:1], {KA_WS}
    v_lshrrev_b32 v1, 6, v0
    v_and_b32 v0, 63, v0
    s_lshr_b32 s25, s2, 5
    v_readfirstlane_b32 s24, v1
    s_lshr_b32 s3, s2, 3
    s_and_b32 s3, s3, 3
    s_lshl_b32 s3, s3, 3
    s_and_b32 s26, s2, 7
    s_add_u32 s26, s26, s3
    s_waitcnt lgkmcnt(0)
    """)
    srd(a, 16, 6, WS_BYTES)
    a.e(f"""
    s_lshl_b32 s3, s26, 17
    s_add_u32 s27, s3, {WS_QKV}
    s_add_u32 s28, s3, {WS_QKV + 32*131072}
    s_add_u32 s29, s3, {WS_QKV + 64*131072}
    v_lshlrev_b32 v3, 4, v0
    s_lshl_b32 s3, s24, 10
    s_add_u32 s35, s28, s3
    v_add_u32 v28, s35, v3
    """)
    a.e(f"""
    s_lshr_b32 s35, s24, 1
    s_lshl_b32 s35, s35, 11
    s_and_b32 s36, s24, 1
    s_lshl_b32 s36, s36, 8
    s_add_u32 s35, s35, s36
    s_add_u32 s35, s35, s29
    v_lshrrev_b32 v29, 2, v0
    v_lshlrev_b32 v29, 4, v29
    v_bfe_u32 v30, v0, 1, 1
    v_lshl_add_u32 v29, v30, 10, v29
    v_and_b32 v30, 1, v0
    v_lshl_add_u32 v29, v30, 9, v29
    v_add_u32 v29, s35, v29
    s_lshl_b32 s32, s24, 10
    """)
    def dma(soff, m0l):
        return [list(m0l) + ["s_nop 0", f"buffer_load_dwordx4 v28, s[16:19], {soff} offen lds"],
                ["s_add_u32 m0, m0, 8192", "s_nop 0", f"buffer_load_dwordx4 v29, s[16:19], {soff} offen lds"]]
    def flat(items):
        for it in items:
            for l in (it if isinstance(it, list) else [it]): a.e(l)
    a.e(f"""
    s_lshl_b32 s3, s25, 3
    s_add_u32 s33, s3, s24
    s_lshl_b32 s3, s33, 11
    s_add_u32 s3, s3, s27
    buffer_load_dwordx4 {v(VQ,4)}, v3, s[16:19], s3 offen
    buffer_load_dwordx4 {v(VQ+4,4)}, v3, s[16:19], s3 offen offset:1024
    """)
    for st in range(3):
        a.e(f"s_mov_b32 s30, {st*8192}")
        flat(dma("s30", [f"s_add_u32 m0, s32, {st*16384}"]))
    a.e(f"s_add_u32 s31, s32, {2*16384}")
    a.e(f"""
    v_mov_b32 v1, v3
    v_lshrrev_b32 v30, 5, v0
    v_bfe_u32 v31, v0, 2, 2
    v_lshl_add_u32 v30, v30, 2, v31
    v_lshlrev_b32 v2, 6, v30
    v_bfe_u32 v30, v0, 4, 1
    v_lshl_add_u32 v2, v30, 5, v2
    v_and_b32 v30, 1, v0
    v_lshl_add_u32 v2, v30, 4, v2
    v_bfe_u32 v30, v0, 1, 1
    v_lshl_add_u32 v2, v30, 3, v2
    v_mov_b32 v120, v2
    v_add_u32 v2, 8192, v2
    """)
    a.e(f"""
    v_bfe_u32 v30, v0, 2, 1
    v_bfe_u32 v31, v0, 4, 1
    v_xor_b32 v30, v30, v31
    v_and_b32 v31, 3, v0
    v_or_b32 v30, v30, v31
    v_cmp_eq_u32 vcc, 0, v30
    v_mov_b32 v31, 0x3f803f80
    s_nop 0
    v_cndmask_b32 v{VONE}, 0, v31, vcc
    v_cndmask_b32 v{VONE+1}, 0, v31, vcc
    v_cndmask_b32 v{VONE+2}, 0, v31, vcc
    v_cndmask_b32 v{VONE+3}, 0, v31, vcc
    """)
    for i in range(16): a.e(f"v_mov_b32 v{VO+i}, 0")
    for i in range(4): a.e(f"v_mov_b32 v{VL+i}, 0")
    def kread(t):
        return [f"ds_read_b128 {v(VK+4*kb,4)}, v1 offset:{t*2048+kb*1024}" for kb in range(2)]
    def vread(t, m, vaddr=2):
        return [f"ds_read_b64_tr_b16 {v(VV+4*m+2*q,2)}, v{vaddr} offset:{t*2048+m*1024+q*512}" for q in range(2)]
    def qk(sb, kb, cinit):
        S = v(VS[sb], 16)
        c = cinit if kb == 0 else S
        return f"v_mfma_f32_32x32x16_bf16 {S}, {v(VK+4*kb,4)}, {v(VQ+4*kb,4)}, {c}"
    def rowmax(sb, dst, t0):
        S = VS[sb]
        a.e(f"v_max3_f32 v{dst}, v{S}, v{S+1}, v{S+2}")
        for i in range(3, 15, 2): a.e(f"v_max3_f32 v{dst}, v{dst}, v{S+i}, v{S+i+1}")
        a.e(f"v_max_f32 v{dst}, v{dst}, v{S+15}")
    def halfmax(dst, t0):
        a.e(f"v_mov_b32 v{t0}, v{dst}")
        a.e("s_nop 1")
        a.e(f"v_permlane32_swap_b32 v{dst}, v{t0}")
        a.e("s_nop 1")
        a.e(f"v_max_f32 v{dst}, v{dst}, v{t0}")
    a.e("s_waitcnt vmcnt(4)")
    a.e("s_barrier")
    P.stamp(2); P.real(7)
    flat(kread(0))
    a.e("s_waitcnt lgkmcnt(0)")
    a.e(qk(0, 0, "0")); a.e(qk(0, 1, "0"))
    flat(vread(0, 0)); flat(vread(0, 1))
    a.e("s_nop 9")
    rowmax(0, 30, 31); halfmax(30, 31)
    for i in range(16): a.e(f"v_sub_f32 v{VNEG+i}, 0, v30")
    a.e("s_nop 1")
    a.e(qk(0, 0, v(VNEG, 16))); a.e(qk(0, 1, v(VNEG, 16)))
    flat(kread(1))
    a.e("s_waitcnt lgkmcnt(0)")
    a.e("s_mov_b32 s34, 16")
    a.e("s_nop 6")
    def ex(sb, lo, hi): return [f"v_exp_f32 v{VS[sb]+i}, v{VS[sb]+i}" for i in range(lo, hi)]
    def cv(sb, m): return [f"v_cvt_pk_bf16_f32 v{VP+4*m+i}, v{VS[sb]+8*m+2*i}, v{VS[sb]+8*m+2*i+1}" for i in range(4)]
    def pv(m): return f"v_mfma_f32_32x32x16_bf16 {v(VO,16)}, {v(VV+4*m,4)}, {v(VP+4*m,4)}, {v(VO,16)}"
    def sm(m): return f"v_mfma_f32_16x16x32_bf16 {v(VL,4)}, {v(VONE,4)}, {v(VP+4*m,4)}, {v(VL,4)}"
    a.label("loop")
    for t in range(4):
        sb, nb = t & 1, (t + 1) & 1
        L = []
        L.append("s_waitcnt lgkmcnt(4)")
        L.append(qk(nb, 0, v(VNEG, 16)))
        L += ex(sb, 0, 4)
        L.append(qk(nb, 1, v(VNEG, 16)))
        if t == 2:
            L += ["s_waitcnt vmcnt(2)", "s_barrier", "v_add_u32 v1, 16384, v1", "v_and_b32 v1, 0xffff, v1"]
        L += kread((t + 2) & 3)
        L += ex(sb, 4, 8)
        L += ex(sb, 8, 9)
        L += cv(sb, 0)
        L += ex(sb, 9, 12)
        L.append("s_waitcnt lgkmcnt(4)")
        L.append(pv(0))
        if t == 3:
            L += ["v_add_u32 v2, 16384, v2", "v_and_b32 v2, 0xffff, v2"]
        L += vread((t + 1) & 3, 0)
        L += ex(sb, 12, 16)
        L.append(sm(0))
        L += cv(sb, 1)
        if t == 2:
            d = dma("s30", ["s_add_u32 s30, s30, 8192", "s_cmp_ge_u32 s30, 131072", f"s_cselect_b32 s30, {hex(OOB)}, s30",
                            "s_add_u32 s31, s31, 16384", "s_and_b32 s31, s31, 0xffff", "s_mov_b32 m0, s31"])
            L += d[0] + d[1]
        else:
            L.append("s_nop 0")
        L.append("s_waitcnt lgkmcnt(4)")
        L.append(pv(1))
        L += vread((t + 1) & 3, 1)
        L.append(sm(1))
        flat(L)
    a.e(f"""
    s_sub_u32 s34, s34, 1
    s_cmp_lg_u32 s34, 0
    s_cbranch_scc1 {a.L('loop')}
    s_waitcnt lgkmcnt(0)
    s_nop 7
    """)
    P.stamp(3); P.real(8)
    a.e(f"v_max3_f32 v30, abs(v{VO}), abs(v{VO+1}), abs(v{VO+2})")
    for i in range(3, 15, 2): a.e(f"v_max3_f32 v30, v30, abs(v{VO+i}), abs(v{VO+i+1})")
    a.e(f"v_max_f32 v30, v30, abs(v{VO+15})")
    a.e(f"v_sub_f32 v31, v{VO}, v{VO}")
    for i in range(1, 16): a.e(f"v_fma_f32 v31, v{VO+i}, 0, v31")
    a.e(f"""
    v_add_f32 v31, v31, v{VL}
    v_mov_b32 v30, {fx(2.0**64)}
    v_cmp_nlt_f32 vcc, v31, v30
    s_cmp_lg_u64 vcc, 0
    """)
    if force_fallback: a.e("s_cmp_eq_u32 s34, 0")
    a.e(f"s_cbranch_scc1 {a.L('slow')}")
    a.label("fin")
    if pf:
        a.e("s_lshl_b32 s3, s2, 3")
        a.e("s_add_u32 s3, s3, s24")
        a.e("s_lshl_b32 s3, s3, 6")
        a.e("v_add_u32 v124, s3, v0")
        prefetch(a, KA_WO, 1024*2048, 40, 122, 256*512, 124)
        prefetch(a, KA_W2, 3584*2048, 48, 122, 256*512, 124)
    a.e(f"v_rcp_f32 v30, v{VL}")
    a.e(f"""
    s_mul_i32 s3, s33, {AH_RB}
    s_lshl_b32 s35, s26, 11
    s_add_u32 s3, s3, s35
    s_add_u32 s3, s3, {WS_AH}
    """)
    for i in range(16): a.e(f"v_mul_f32 v{VO+i}, v{VO+i}, v30")
    for i in range(8): a.e(f"v_cvt_pk_bf16_f32 v{VP+i}, v{VO+2*i}, v{VO+2*i+1}")
    a.e(f"buffer_store_dwordx4 {v(VP,4)}, v3, s[16:19], s3 offen {st_flags}")
    a.e(f"buffer_store_dwordx4 {v(VP+4,4)}, v3, s[16:19], s3 offen offset:1024 {st_flags}")
    P.stamp(4)
    if prof: a.e("s_waitcnt vmcnt(0)")
    P.stamp(5); P.real(6)
    P.dump(9, 24, 16, vt=30)
    a.label("end")
    a.e("s_endpgm")

    a.label("slow")
    a.e("s_waitcnt vmcnt(0)")
    a.e(f"v_mov_b32 v30, 0xff800000")
    a.e("s_mov_b32 s34, 0")
    a.label("slow1")
    a.e(f"""
    s_add_u32 s3, s28, s34
    buffer_load_dwordx4 {v(VK,4)}, v3, s[16:19], s3 offen
    buffer_load_dwordx4 {v(VK+4,4)}, v3, s[16:19], s3 offen offset:1024
    s_waitcnt vmcnt(0)
    """)
    a.e(qk(0, 0, "0")); a.e(qk(0, 1, "0"))
    a.e("s_nop 11")
    rowmax(0, 31, 121)
    a.e(f"""
    v_max_f32 v30, v30, v31
    s_add_u32 s34, s34, 2048
    s_cmp_lt_u32 s34, 131072
    s_cbranch_scc1 {a.L('slow1')}
    """)
    halfmax(30, 31)
    for i in range(16): a.e(f"v_sub_f32 v{VNEG+i}, 0, v30")
    for i in range(16): a.e(f"v_mov_b32 v{VO+i}, 0")
    for i in range(4): a.e(f"v_mov_b32 v{VL+i}, 0")
    a.e(f"""
    s_lshl_b32 s36, s24, 11
    s_add_u32 s36, s36, {AT_PRIV}
    v_add_u32 v120, s36, v120
    v_lshrrev_b32 v29, 2, v0
    v_lshlrev_b32 v29, 4, v29
    v_bfe_u32 v31, v0, 1, 1
    v_lshl_add_u32 v29, v31, 10, v29
    v_and_b32 v31, 1, v0
    v_lshl_add_u32 v29, v31, 9, v29
    s_mov_b32 s34, 0
    """)
    a.label("slow2")
    a.e(f"""
    s_add_u32 s3, s28, s34
    buffer_load_dwordx4 {v(VK,4)}, v3, s[16:19], s3 offen
    buffer_load_dwordx4 {v(VK+4,4)}, v3, s[16:19], s3 offen offset:1024
    s_add_u32 s3, s29, s34
    s_mov_b32 m0, s36
    s_nop 0
    buffer_load_dwordx4 v29, s[16:19], s3 offen lds
    s_add_u32 s3, s3, 256
    s_add_u32 m0, s36, 1024
    s_nop 0
    buffer_load_dwordx4 v29, s[16:19], s3 offen lds
    s_waitcnt vmcnt(0)
    """)
    a.e(qk(0, 0, v(VNEG, 16))); a.e(qk(0, 1, v(VNEG, 16)))
    flat(vread(0, 0, 120)); flat(vread(0, 1, 120))
    a.e("s_nop 9")
    flat(ex(0, 0, 16))
    a.e("s_nop 0")
    flat(cv(0, 0)); flat(cv(0, 1))
    a.e("s_waitcnt lgkmcnt(0)")
    a.e("s_nop 0")
    a.e(pv(0)); a.e(pv(1)); a.e(sm(0)); a.e(sm(1))
    a.e(f"""
    s_add_u32 s34, s34, 2048
    s_cmp_lt_u32 s34, 131072
    s_cbranch_scc1 {a.L('slow2')}
    s_nop 15
    s_branch {a.L('fin')}
    """)
    return a.text(), 128
```

```python
from common import *

G2_SLOT = 16384
G2_LDS = 8 * 8704
RS = 272

def gen_gemm2(prof=False):
    a = Asm("g2")
    P = Prof(a, prof, 3)
    P.real(0); P.stamp(1)
    NST = 36
    a.e(f"""
    s_cmp_ge_u32 s2, 256
    s_cbranch_scc1 {a.L('end')}
    s_load_dwordx2 s[4:5], s[0:1], {KA_X}
    s_load_dwordx2 s[6:7], s[0:1], {KA_WS}
    s_load_dwordx2 s[36:37], s[0:1], {KA_WO}
    s_load_dwordx2 s[38:39], s[0:1], {KA_W2}
    s_load_dwordx2 s[40:41], s[0:1], {KA_B2}
    s_load_dwordx2 s[42:43], s[0:1], {KA_OUT}
    v_lshrrev_b32 v1, 6, v0
    v_and_b32 v0, 63, v0
    s_and_b32 s3, s2, 7
    v_readfirstlane_b32 s24, v1
    s_lshr_b32 s35, s2, 3
    s_lshr_b32 s25, s3, 1
    s_lshl_b32 s25, s25, 2
    s_and_b32 s27, s35, 3
    s_add_u32 s25, s25, s27
    s_and_b32 s26, s3, 1
    s_lshl_b32 s26, s26, 3
    s_lshr_b32 s27, s35, 2
    s_add_u32 s26, s26, s27
    s_waitcnt lgkmcnt(0)
    """)
    srd(a, 16, 6, WS_BYTES)
    srd(a, 12, 36, 1024 * 2048)
    a.e(f"""
    s_and_b32 s3, s24, 3
    s_lshl_b32 s35, s25, 2
    s_add_u32 s3, s3, s35
    s_mul_i32 s28, s3, {AH_RB}
    s_lshr_b32 s35, s24, 2
    s_lshl_b32 s35, s35, 12
    s_add_u32 s28, s28, s35
    s_add_u32 s28, s28, {WS_AH}
    v_lshlrev_b32 v3, 4, v0
    """)
    a.e(f"""
    v_lshrrev_b32 v4, 3, v0
    v_lshlrev_b32 v4, 11, v4
    v_bfe_u32 v5, v0, 4, 1
    v_lshlrev_b32 v5, 2, v5
    v_and_b32 v6, 7, v0
    v_xor_b32 v5, v5, v6
    v_lshl_add_u32 v4, v5, 4, v4
    s_lshl_b32 s3, s24, 15
    s_lshl_b32 s35, s26, 7
    s_add_u32 s3, s3, s35
    v_add_u32 v4, s3, v4
    v_add_u32 v5, {8*2048 - 1024}, v4
    s_lshl_b32 s32, s24, 11
    s_mov_b32 s29, 0
    s_mov_b32 s30, 0
    """)
    a.e(f"""
    v_lshrrev_b32 v8, 5, v0
    v_bfe_u32 v9, v0, 2, 2
    v_lshl_add_u32 v8, v8, 2, v9
    v_lshlrev_b32 v8, 7, v8
    v_bfe_u32 v9, v0, 3, 1
    v_lshl_add_u32 v8, v9, 6, v8
    v_bfe_u32 v9, v0, 4, 1
    v_lshl_add_u32 v8, v9, 5, v8
    v_and_b32 v9, 3, v0
    v_lshl_add_u32 v8, v9, 3, v8
    s_lshr_b32 s35, s24, 2
    s_lshl_b32 s35, s35, 13
    v_add_u32 v6, s35, v8
    v_xor_b32 v7, 64, v6
    """)
    VA = 32
    VW = 96
    VACC = 128
    def group(slot):
        L = []
        L.append([f"s_add_u32 m0, s32, {slot*G2_SLOT}", "s_nop 0", "buffer_load_dwordx4 v4, s[12:15], s29 offen lds"])
        L.append("buffer_load_dwordx4 v5, s[12:15], s29 offen offset:1024 lds")
        for i in range(4):
            L.append(f"buffer_load_dwordx4 {v(VA+slot*16+4*i,4)}, v3, s[16:19], s28 offen offset:{1024*i}")
        L.append([f"s_add_u32 s29, s29, {128*2048}", "s_add_u32 s28, s28, 8192", "s_add_u32 s30, s30, 1",
                  "s_cmp_eq_u32 s30, 8", "s_cselect_b32 s12, s38, s12", "s_cselect_b32 s13, s39, s13",
                  f"s_cselect_b32 s14, {3584*2048}, s14", "s_cselect_b32 s29, 0, s29",
                  f"s_cmp_ge_u32 s30, {NST}", "s_cselect_b32 s28, 0x40000000, s28"])
        return L
    def flat(items):
        for it in items:
            for l in (it if isinstance(it, list) else [it]): a.e(l)
    for st in range(3): flat(group(st))
    for i in range(32): a.e(f"v_mov_b32 v{VACC+i}, 0")
    a.e(f"s_mov_b32 s34, {NST//4}")
    P.stamp(2); P.real(7)
    a.label("loop")
    for sl in range(4):
        a.e("s_waitcnt vmcnt(12)")
        a.e("s_barrier")
        R = []
        for st in range(4):
            for b in range(2):
                for q in range(2):
                    R.append(f"ds_read_b64_tr_b16 {v(VW+(st*2+b)*4+2*q,2)}, v{6+b} offset:{sl*G2_SLOT + (16*st+8*q)*128}")
        g = group((sl + 3) % 4)
        flat(R[:8])
        flat(g[0:1])
        flat(R[8:])
        flat(g[1:2])
        for st in range(4):
            a.e(f"s_waitcnt lgkmcnt({12-4*st})")
            for b in range(2):
                acc = v(VACC + 16*b, 16)
                a.e(f"v_mfma_f32_32x32x16_bf16 {acc}, {v(VW+(st*2+b)*4,4)}, {v(VA+sl*16+4*st,4)}, {acc}")
            flat(g[2+st:3+st])
        flat(g[6:])
    a.e(f"""
    s_sub_u32 s34, s34, 1
    s_cmp_lg_u32 s34, 0
    s_cbranch_scc1 {a.L('loop')}
    s_waitcnt vmcnt(0)
    s_barrier
    """)
    P.stamp(3); P.real(8)
    srd(a, 8, 4, 2048 * 2048)
    srd(a, 20, 40, 2048)
    srd(a, 12, 42, 2048 * 2048)
    a.e(f"""
    s_lshl_b32 s3, s25, 7
    s_lshl_b32 s35, s24, 4
    s_add_u32 s3, s3, s35
    s_lshl_b32 s3, s3, 11
    s_lshl_b32 s35, s26, 7
    s_add_u32 s3, s3, s35
    v_lshrrev_b32 v8, 3, v0
    v_lshlrev_b32 v9, 11, v8
    v_and_b32 v10, 7, v0
    v_lshl_add_u32 v9, v10, 4, v9
    v_add_u32 v9, s3, v9
    v_add_u32 v11, 16384, v9
    v_lshlrev_b32 v12, 4, v10
    buffer_load_dwordx4 v[32:35], v9, s[8:11], 0 offen
    buffer_load_dwordx4 v[36:39], v11, s[8:11], 0 offen
    buffer_load_dwordx4 v[40:43], v12, s[20:23], s35 offen
    """)
    a.e(f"""
    v_and_b32 v13, 31, v0
    v_mul_u32_u24 v13, {RS}, v13
    v_lshrrev_b32 v14, 5, v0
    v_lshl_add_u32 v13, v14, 4, v13
    s_mul_i32 s3, s24, 8704
    v_add_u32 v13, s3, v13
    """)
    for b in range(2):
        for i in range(4):
            a.e(f"ds_write_b128 v13, {v(VACC+16*b+4*i,4)} offset:{(32*b+8*i)*4}")
    a.e(f"""
    s_lshr_b32 s3, s24, 1
    s_mul_i32 s3, s3, 8704
    s_and_b32 s35, s24, 1
    s_mul_i32 s35, s35, {16*RS}
    s_add_u32 s3, s3, s35
    v_mul_u32_u24 v13, {RS}, v8
    v_lshl_add_u32 v13, v10, 5, v13
    v_add_u32 v13, s3, v13
    s_waitcnt lgkmcnt(0)
    s_barrier
    """)
    for p in range(2):
        for kh in range(2):
            for j in range(2):
                a.e(f"ds_read_b128 {v(64+p*16+kh*8+4*j,4)}, v13 offset:{p*8*RS + kh*4*8704 + 16*j}")
    a.e("s_waitcnt vmcnt(0)")
    for i in range(4):
        a.e(f"v_lshlrev_b32 v{44+2*i}, 16, v{40+i}")
        a.e(f"v_and_b32 v{45+2*i}, 0xffff0000, v{40+i}")
    for p in range(2):
        for i in range(4):
            a.e(f"v_lshlrev_b32 v{52+2*i}, 16, v{32+4*p+i}")
            a.e(f"v_and_b32 v{53+2*i}, 0xffff0000, v{32+4*p+i}")
        for i in range(8): a.e(f"v_add_f32 v{52+i}, v{52+i}, v{44+i}")
        a.e(f"s_waitcnt lgkmcnt({4-4*p})")
        for i in range(8): a.e(f"v_add3_f32_NOPE" if False else f"v_add_f32 v{64+p*16+i}, v{64+p*16+i}, v{64+p*16+8+i}")
        for i in range(8): a.e(f"v_add_f32 v{52+i}, v{52+i}, v{64+p*16+i}")
        for i in range(4): a.e(f"v_cvt_pk_bf16_f32 v{100+4*p+i}, v{52+2*i}, v{53+2*i}")
        a.e(f"buffer_store_dwordx4 {v(100+4*p,4)}, v{9 if p == 0 else 11}, s[12:15], 0 offen")
    P.stamp(4)
    if prof: a.e("s_waitcnt vmcnt(0)")
    P.stamp(5); P.real(6)
    P.dump(9, 24, 16, vt=30)
    a.label("end")
    a.e("s_endpgm")
    return a.text(), 160
```

```python
from common import *

def gen_ln(pf=False):
    a = Asm("ln")
    a.e(f"""
    s_cmp_ge_u32 s2, 256
    s_cbranch_scc1 {a.L('end')}
    s_load_dwordx2 s[4:5], s[0:1], {KA_X}
    s_load_dwordx2 s[6:7], s[0:1], {KA_WS}
    s_lshl_b32 s3, s2, 14
    v_lshrrev_b32 v1, 6, v0
    v_and_b32 v2, 63, v0
    v_lshlrev_b32 v1, 11, v1
    v_lshlrev_b32 v2, 4, v2
    v_add3_u32 v1, v1, v2, s3
    s_waitcnt lgkmcnt(0)
    """)
    srd(a, 8, 4, 2048 * 2048)
    srd(a, 12, 6, 2048 * 2048)
    a.e("""
    buffer_load_dwordx4 v[4:7], v1, s[8:11], 0 offen
    buffer_load_dwordx4 v[8:11], v1, s[8:11], 0 offen offset:1024
    s_waitcnt vmcnt(0)
    """)
    for i in range(8):
        a.e(f"v_lshlrev_b32 v{16+2*i}, 16, v{4+i}")
        a.e(f"v_and_b32 v{17+2*i}, 0xffff0000, v{4+i}")
    a.e("v_add_f32 v12, v16, v17")
    for i in range(2, 16): a.e(f"v_add_f32 v12, v12, v{16+i}")
    wave_sum(a, 12, 20)
    a.e("s_nop 1")
    a.e(f"v_mov_b32 v13, {fx(1.0/1024)}")
    a.e("v_mul_f32 v13, s20, v13")
    for i in range(16): a.e(f"v_sub_f32 v{16+i}, v{16+i}, v13")
    a.e("v_mul_f32 v12, v16, v16")
    for i in range(1, 16): a.e(f"v_fmac_f32 v12, v{16+i}, v{16+i}")
    wave_sum(a, 12, 21)
    a.e("s_nop 1")
    a.e(f"v_mov_b32 v13, {fx(1.0/1024)}")
    a.e(f"v_mov_b32 v14, {fx(1e-5)}")
    a.e("v_fma_f32 v13, s21, v13, v14")
    a.e("v_rsq_f32 v13, v13")
    a.e("s_nop 0")
    for i in range(16): a.e(f"v_mul_f32 v{16+i}, v{16+i}, v13")
    for i in range(8): a.e(f"v_cvt_pk_bf16_f32 v{4+i}, v{16+2*i}, v{17+2*i}")
    a.e("""
    buffer_store_dwordx4 v[4:7], v1, s[12:15], 0 offen
    buffer_store_dwordx4 v[8:11], v1, s[12:15], 0 offen offset:1024
    """)
    if pf:
        a.e("s_lshl_b32 s3, s2, 9")
        a.e("v_add_u32 v30, s3, v0")
        prefetch(a, KA_WQKV, 1024*6144, 24, 28, 256*512, 30)
        prefetch(a, KA_W1, 1024*7168, 32, 28, 256*512, 30)
    a.label("end")
    a.e("s_endpgm")
    return a.text(), 32
```

```python
import sys, importlib
sys.path.insert(0, "gen")
from build import assemble, NAME
mod = importlib.import_module(sys.argv[1])
t, nv = mod.gen(prof=("c" if "profc" in sys.argv else ("prof" in sys.argv)), force_fallback="fallback" in sys.argv, opt=sys.argv[3:])
assemble([(NAME + "_kernel", t, nv, 256, 512, mod.LDS_BYTES)], sys.argv[2])
```
